```python
import torch

def _softmax(x, axis=-1):
    return torch.softmax(x, dim=axis)
def _gelu(x):
    return torch.nn.functional.gelu(x, approximate="tanh")
def _silu(x):
    return torch.nn.functional.silu(x)
def _sigmoid(x):
    return torch.sigmoid(x)
def _layernorm(x, axis=-1, eps=1e-5):
    m = x.mean(dim=axis, keepdim=True)
    v = x.var(dim=axis, keepdim=True, unbiased=False)
    return (x - m) / torch.sqrt(v + eps)
def _scatter_add(tgt, idx, src, axis=0):
    return tgt.clone().index_add_(axis, idx, src)
def _segment_sum(src, seg, n):
    out = torch.zeros((n,) + src.shape[1:], dtype=src.dtype)
    return out.index_add_(0, seg, src)
def _pad(x, pw):
    flat = tuple(v for pair in reversed(pw) for v in pair)
    return torch.nn.functional.pad(x, flat)

kernel_name = 'recurrent_scan__ssm_conv_h3__dense_activation_squared_relu__prompt'

def setup_inputs():

    _w = (lambda a: (lambda t: t.to(torch.bfloat16) if t.is_floating_point() else t)(torch.as_tensor(a)))
    def _A_setup():
        B, S, D = 1, 2048, 640
        ks = 4
        return {
            "q": _w((lambda *s: torch.randn(*s, dtype=torch.bfloat16) * 0.05)(B, S, D)),
            "k": _w((lambda *s: torch.randn(*s, dtype=torch.bfloat16) * 0.2)(B, S, D)),
            "v": _w((lambda *s: torch.randn(*s, dtype=torch.bfloat16) * 0.2)(B, S, D)),
            "shift_k": _w((lambda *s: torch.randn(*s, dtype=torch.bfloat16) * 0.2)(D, ks) * 0.5),
            "ssm_k": _w((lambda *s: torch.randn(*s, dtype=torch.bfloat16) * 0.2)(D, S) * (1.0 / S ** 0.5)),
            "ssm_D": _w((lambda *s: torch.randn(*s, dtype=torch.bfloat16) * 0.2)(D)),
        }
    _A_in = _A_setup()

    def _B_setup():
        B, S, D, F = 1, 2048, 640, 1536
        return {
            "x": _w((lambda *s: torch.randn(*s, dtype=torch.bfloat16) * 0.05)(B, S, D)),
            "w1": _w((lambda *s: torch.randn(*s, dtype=torch.bfloat16) * 0.1)(D, F)),
            "b1": _w((lambda *s: torch.randn(*s, dtype=torch.bfloat16) * 0.8)(F)),
            "w2": _w((lambda *s: torch.randn(*s, dtype=torch.bfloat16) * 0.1)(F, D)),
            "b2": _w((lambda *s: torch.randn(*s, dtype=torch.bfloat16) * 6.4)(D)),
        }
    _B_in = _B_setup()

    return {
        "A_q": _A_in["q"],
        "A_k": _A_in["k"],
        "A_v": _A_in["v"],
        "A_shift_k": _A_in["shift_k"],
        "A_ssm_k": _A_in["ssm_k"],
        "A_ssm_D": _A_in["ssm_D"],
        "B_x": _B_in["x"],
        "B_w1": _B_in["w1"],
        "B_b1": _B_in["b1"],
        "B_w2": _B_in["w2"],
        "B_b2": _B_in["b2"],
    }

def reference(A_q, A_k, A_v, A_shift_k, A_ssm_k, A_ssm_D, B_x, B_w1, B_b1, B_w2, B_b2):
    def _A_ref(q, k, v, shift_k, ssm_k, ssm_D):
        B, S, D = q.shape
        ks = shift_k.shape[-1]
        k_pad = _pad(k, ((0, 0), (ks - 1, 0), (0, 0)))
        k_shift = torch.zeros_like(k)
        for t in range(ks):
            k_shift = k_shift + k_pad[:, t:t + S, :] * shift_k[:, ks - 1 - t][None, None, :]
        kv = k_shift * v
        L = 2 * S
        kv_pad = _pad(kv, ((0, 0), (0, S), (0, 0)))
        kf_pad = _pad(ssm_k, ((0, 0), (0, S)))
        kv_f = (lambda x, axes=(-2,-1): torch.fft.rfft2(x.float(), dim=axes))(kv_pad[:, None, :, :], axes=(1, 2))
        kf_f = (lambda x, axes=(-2,-1): torch.fft.rfft2(x.float(), dim=axes))(kf_pad[:, None, :], axes=(1, 2))
        kf_f = (lambda x, *d: x.permute(*d))(kf_f, 1, 2, 0)
        y_f = kv_f * kf_f[None, :, :, :]
        y = (lambda x, s, axes=(-2,-1): torch.fft.irfft2(x, s=s, dim=axes).to(torch.bfloat16))(y_f, (1, L), axes=(1, 2))[:, 0, :S, :]
        y = y + kv * ssm_D[None, None, :]
        return q * y

    def _B_ref(x, w1, b1, w2, b2):
        h = torch.einsum("bsd,df->bsf", x, w1) + b1
        zero = torch.zeros_like(h)
        r = torch.where(h > zero, h, zero)
        h = r * r
        out = torch.einsum("bsf,fd->bsd", h, w2) + b2
        return out

    x = A_q
    xn = _layernorm(x, axis=-1)
    s = _A_ref(xn, A_k, A_v, A_shift_k, A_ssm_k, A_ssm_D)
    g = _silu(_B_ref(xn, B_w1, B_b1, B_w2, B_b2))
    return x + s * g
```

```python
class Asm:
    def __init__(self):
        self.lines = []
        self._uid = 0
    def __call__(self, s=""):
        for l in s.split("\n"):
            l = l.strip()
            if l:
                self.lines.append("    " + l)
    def label(self, l):
        self.lines.append(l + ":")
    def raw(self, s):
        self.lines.append(s)
    def comment(self, s):
        self.lines.append("    ; " + s)
    def uid(self, p="L"):
        self._uid += 1
        return f"{p}_{self._uid}"
    def text(self):
        return "\n".join(self.lines) + "\n"

def v(i, n=1):
    return f"v{i}" if n == 1 else f"v[{i}:{i+n-1}]"
def s(i, n=1):
    return f"s{i}" if n == 1 else f"s[{i}:{i+n-1}]"
def a(i, n=1):
    return f"a{i}" if n == 1 else f"a[{i}:{i+n-1}]"

def kstart(A, name):
    A.raw(f".globl {name}")
    A.raw(".p2align 8")
    A.raw(f".type {name},@function")
    A.label(name)

def kdesc(name, vgpr, sgpr=96, accum=None):
    if accum is None:
        accum = min(256, (vgpr + 3) // 4 * 4)
    return f""".p2align 6
.amdhsa_kernel {name}
  .amdhsa_next_free_vgpr {vgpr}
  .amdhsa_next_free_sgpr {sgpr}
  .amdhsa_accum_offset {accum}
  .amdhsa_group_segment_fixed_size 0
  .amdhsa_kernarg_size 112
  .amdhsa_user_sgpr_count 2
  .amdhsa_user_sgpr_kernarg_segment_ptr 1
  .amdhsa_system_sgpr_workgroup_id_x 1
  .amdhsa_float_denorm_mode_32 3
.end_amdhsa_kernel
"""

KA = dict(q=0, k=8, v=16, sk=24, ssm=32, D=40, x=48, w1=56, b1=64, w2=72, b2=80, out=88, dbg=96, ws=104)
S_, D_, F_ = 2048, 640, 1536
SZ = dict(q=S_*D_*2, k=S_*D_*2, v=S_*D_*2, sk=D_*4*2, ssm=D_*S_*2, D=D_*2, w1=D_*F_*2, b1=F_*2, w2=F_*D_*2, b2=D_*2, out=S_*D_*2)
WS_H   = 0
WS_W2  = WS_H + 32*48*4*1024
WS_KV  = WS_W2 + 8*48*5*1024
WS_Z   = WS_KV + 640*4096
WS_ST  = WS_Z + 640*4096
WS_END = WS_ST + 2048*8

def load_ptr(A, sreg, name):
    A(f"s_load_dwordx2 {s(sreg,2)}, s[0:1], {KA[name]}")

def make_srd(A, sreg, size, add=0):
    if add:
        A(f"s_add_u32 {s(sreg)}, {s(sreg)}, {add}")
        A(f"s_addc_u32 {s(sreg+1)}, {s(sreg+1)}, 0")
    A(f"s_and_b32 {s(sreg+1)}, {s(sreg+1)}, 0xffff")
    A(f"s_mov_b32 {s(sreg+2)}, {size}")
    A(f"s_mov_b32 {s(sreg+3)}, 0x00020000")
```

```python
from asmlib import *

COPY = 4160
UOFF = 4*COPY
USZ  = 4608
WREG = UOFF + USZ

def conv_body(A, name, sW, sD):
    A(f"s_lshl_b32 s23, {s(sD)}, 12")
    A("s_add_u32 s4, s4, s23"); A("s_addc_u32 s5, s5, 0")
    make_srd(A, 4, 4096)
    make_srd(A, 8, 640*4096, add=WS_KV)
    make_srd(A, 12, 640*4096, add=WS_Z)
    make_srd(A, 16, SZ["D"])
    A(f"s_lshl_b32 s24, {s(sD)}, 1")
    A("v_mov_b32 v3, s24")
    A("buffer_load_ushort v4, v3, s[16:19], 0 offen")
    A("v_lshlrev_b32 v5, 4, v2")
    for i in range(4):
        A(f"s_add_u32 m0, {s(sW)}, {UOFF + 1024*i}")
        A(f"s_add_u32 s25, s23, {1024*i}")
        A(f"buffer_load_dwordx4 v5, s[8:11], s25 offen lds")
    A("v_mov_b32 v7, 0x80000000")
    A("v_add_u32 v6, -16, v5")
    A("v_cmp_eq_u32 vcc, 0, v2")
    A("s_nop 1")
    A("v_cndmask_b32 v8, v6, v7, vcc")
    for it in range(1, 4):
        A(f"v_add_u32 v{8+it}, {1024*it-16}, v5")
    A("v_mov_b32 v12, 4080")
    A("v_cndmask_b32 v12, v7, v12, vcc")
    for it in range(4):
        d = 16 + 6*it
        A(f"buffer_load_dwordx4 {v(d,4)}, v{8+it}, s[4:7], 0 offen")
        A(f"buffer_load_dwordx2 {v(d+4,2)}, v5, s[4:7], 0 offen offset:{1024*it}")
    A(f"buffer_load_dwordx4 {v(40,4)}, v12, s[4:7], 0 offen")
    A(f"v_mov_b32 v44, 0")
    A(f"v_mov_b32 v45, 0")
    A("v_mov_b32 v46, 0"); A("v_mov_b32 v47, 0")
    A("v_lshlrev_b32 v13, 3, v2")
    A(f"v_add_u32 v13, {s(sW)}, v13")
    A(f"ds_write_b64 v13, v[46:47] offset:{UOFF+4096}")
    A(f"v_add_u32 v14, {s(sW)}, v5")
    A("v_mov_b32 v15, 4112")
    A("v_cndmask_b32 v15, 0, v15, vcc")
    A(f"v_add_u32 v15, {s(sW)}, v15")
    for it in range(5):
        d = 16 + 6*it
        A(f"s_waitcnt vmcnt({7 - 2*it if it < 4 else 0})")
        e = 48
        for k in range(5):
            A(f"v_alignbit_b32 v{e+k}, v{d+k+1}, v{d+k}, 16")
        if it == 4:
            A("s_mov_b64 exec, 3")
        adr = "v14" if it < 4 else "v15"
        off = 16 + 1024*it if it < 4 else 0
        A(f"ds_write_b128 {adr}, {v(e,4)} offset:{off}")
        A(f"v_mov_b32 v54, v{d+1}"); A(f"v_mov_b32 v55, v{d+2}"); A(f"v_mov_b32 v56, v{d+3}"); A(f"v_mov_b32 v57, v{d+4}")
        A(f"ds_write_b128 {adr}, {v(54,4)} offset:{off + COPY}")
        A(f"v_mov_b32 v58, v{e+1}"); A(f"v_mov_b32 v59, v{e+2}"); A(f"v_mov_b32 v60, v{e+3}"); A(f"v_mov_b32 v61, v{e+4}")
        A(f"ds_write_b128 {adr}, {v(58,4)} offset:{off + 2*COPY}")
        A(f"ds_write_b128 {adr}, {v(d+2,4)} offset:{off + 3*COPY}")
        if it == 4:
            A("s_mov_b64 exec, -1")
    A("v_and_b32 v6, 15, v2")
    A("v_lshrrev_b32 v7, 4, v2")
    A("v_and_b32 v8, 3, v6")
    A(f"v_mul_u32_u24 v8, {COPY}, v8")
    A("v_and_b32 v9, 12, v6")
    A("v_lshlrev_b32 v9, 1, v9")
    A("v_lshl_add_u32 v9, v7, 4, v9")
    A("v_add3_u32 v10, v8, v9, " + s(sW))
    A("v_lshlrev_b32 v8, 5, v6")
    A("v_lshlrev_b32 v9, 4, v7")
    A("v_sub_u32 v9, v9, v8")
    A(f"v_add_u32 v9, {480 + UOFF}, v9")
    A(f"v_add_u32 v11, {s(sW)}, v9")
    A("v_lshlrev_b32 v9, 3, v7")
    A("v_add_u32 v12, v8, v9")
    A(f"v_sub_u32 v13, {504 + UOFF}, v12")
    A(f"v_add_u32 v13, {s(sW)}, v13")
    A("s_waitcnt lgkmcnt(0)")
    SA = [64, 128]; SB = [96, 160]; ACC = 192
    def reads(r, st):
        out = []
        for i in range(8):
            out.append(f"ds_read_b64 {v(SA[st]+4*i,2)}, v10 offset:{64*r + 512*i}")
            out.append(f"ds_read_b128 {v(SB[st]+4*i,4)}, v11 offset:{512*(7-i) + 64*r}")
            out.append(f"ds_read_b64 {v(SA[st]+4*i+2,2)}, v10 offset:{64*r + 512*i + 8}")
        return out
    for x in reads(0, 0): A(x)
    for r in range(8):
        st = r & 1
        A("s_waitcnt lgkmcnt(0)")
        nxt = reads(r+1, 1-st) if r < 7 else []
        k = 0
        for i in range(8):
            for n in range(i, 8):
                c = "0" if (r == 0 and i == 0) else v(ACC+4*n,4)
                A(f"v_mfma_f32_16x16x32_bf16 {v(ACC+4*n,4)}, {v(SA[st]+4*i,4)}, {v(SB[st]+4*(n-i),4)}, {c}")
                if k < len(nxt):
                    A(nxt[k]); k += 1
        assert k == len(nxt)
    for n in range(8):
        A(f"ds_read_b64 {v(64+2*n,2)}, v13 offset:{512*(7-n)}")
    A("v_lshlrev_b32 v4, 16, v4")
    A("v_mov_b32 v5, v4")
    A("s_nop 7")
    A("s_waitcnt lgkmcnt(0)")
    for n in range(8):
        k0 = 64 + 2*n; t = 96; a0 = ACC + 4*n
        A(f"v_and_b32 v{t}, 0xffff0000, v{k0+1}")
        A(f"v_lshlrev_b32 v{t+1}, 16, v{k0+1}")
        A(f"v_and_b32 v{t+2}, 0xffff0000, v{k0}")
        A(f"v_lshlrev_b32 v{t+3}, 16, v{k0}")
        A(f"v_pk_mul_f32 {v(t,2)}, {v(t,2)}, v[4:5]")
        A(f"v_pk_mul_f32 {v(t+2,2)}, {v(t+2,2)}, v[4:5]")
        A(f"v_cvt_pk_bf16_f32 v{t+4}, v{t}, v{t+1}")
        A(f"v_cvt_pk_bf16_f32 v{t+5}, v{t+2}, v{t+3}")
        A(f"v_cvt_pk_bf16_f32 v{t+6}, v{a0}, v{a0+1}")
        A(f"v_cvt_pk_bf16_f32 v{t+7}, v{a0+2}, v{a0+3}")
        A(f"v_lshlrev_b32 v{t}, 16, v{t+4}")
        A(f"v_and_b32 v{t+1}, 0xffff0000, v{t+4}")
        A(f"v_lshlrev_b32 v{t+2}, 16, v{t+5}")
        A(f"v_and_b32 v{t+3}, 0xffff0000, v{t+5}")
        A(f"v_lshlrev_b32 v{t+8}, 16, v{t+6}")
        A(f"v_and_b32 v{t+9}, 0xffff0000, v{t+6}")
        A(f"v_lshlrev_b32 v{t+10}, 16, v{t+7}")
        A(f"v_and_b32 v{t+11}, 0xffff0000, v{t+7}")
        A(f"v_pk_add_f32 {v(t,2)}, {v(t,2)}, {v(t+8,2)}")
        A(f"v_pk_add_f32 {v(t+2,2)}, {v(t+2,2)}, {v(t+10,2)}")
        o = 112 + 2*n
        A(f"v_cvt_pk_bf16_f32 v{o}, v{t}, v{t+1}")
        A(f"v_cvt_pk_bf16_f32 v{o+1}, v{t+2}, v{t+3}")
        A(f"buffer_store_dwordx2 {v(o,2)}, v12, s[12:15], s23 offen offset:{512*n}")

def gen_conv(A, name="conv_kernel", n_wg=160):
    kstart(A, name)
    A(f"s_cmp_ge_u32 s2, {n_wg}")
    A(f"s_cbranch_scc1 {name}_end")
    load_ptr(A, 4, "ssm"); load_ptr(A, 8, "ws"); load_ptr(A, 12, "ws"); load_ptr(A, 16, "D")
    A("v_lshrrev_b32 v1, 6, v0")
    A("v_and_b32 v2, 63, v0")
    A("s_nop 0")
    A("v_readfirstlane_b32 s20, v1")
    A("s_lshl_b32 s21, s2, 2")
    A("s_nop 3")
    A("s_add_u32 s21, s21, s20")
    A(f"s_mul_i32 s22, s20, {WREG}")
    A("s_waitcnt lgkmcnt(0)")
    conv_body(A, name, 22, 21)
    A.label(f"{name}_end")
    A("s_endpgm")
    return dict(vgpr=224, lds=4*WREG)
```

```python
from asmlib import *

STAGE = 32768
EXT = 4*STAGE
LDS_G1 = EXT + 8192

def gemm1_ids(A):
    A("s_and_b32 s20, s2, 7")
    A("s_lshr_b32 s21, s2, 3")
    A("s_lshr_b32 s22, s20, 1")
    A("s_lshl_b32 s22, s22, 2")
    A("s_and_b32 s23, s21, 3")
    A("s_add_u32 s30, s22, s23")
    A("s_and_b32 s22, s20, 1")
    A("s_mul_i32 s22, s22, 6")
    A("s_lshr_b32 s23, s21, 2")
    A("s_add_u32 s31, s22, s23")

def gemm1_producer(A, name):
    load_ptr(A, 4, "q"); load_ptr(A, 8, "w1"); load_ptr(A, 12, "b1"); load_ptr(A, 16, "ws")
    A("v_and_b32 v2, 63, v0")
    A("v_lshrrev_b32 v3, 3, v2")
    A("v_and_b32 v4, 7, v2")
    A("s_lshl_b32 s24, s28, 5")
    A("s_movk_i32 s25, 1280")
    for e in range(4):
        A(f"v_add_u32 v5, s24, v3")
        if e: A(f"v_add_u32 v5, {8*e}, v5")
        A(f"v_bfe_u32 v6, v5, 1, 3")
        A(f"v_xor_b32 v6, v6, v4")
        A(f"v_lshlrev_b32 v6, 4, v6")
        A(f"v_mul_lo_u32 v7, v5, s25")
        A(f"v_add_u32 v{10+e}, v7, v6")
    A("v_lshrrev_b32 v3, 4, v2")
    A("v_and_b32 v4, 15, v2")
    A("v_lshlrev_b32 v6, 2, v3")
    A("v_xor_b32 v6, v6, v4")
    A("v_lshlrev_b32 v6, 4, v6")
    A("s_lshl_b32 s24, s28, 4")
    A("s_movk_i32 s25, 3072")
    for e in range(4):
        A(f"v_add_u32 v5, s24, v3")
        if e: A(f"v_add_u32 v5, {4*e}, v5")
        A(f"v_mul_lo_u32 v7, v5, s25")
        A(f"v_add_u32 v{14+e}, v7, v6")
    A("s_mul_i32 s32, s30, 163840")
    A("s_lshl_b32 s33, s31, 8")
    A("s_lshl_b32 s34, s28, 12")
    A("v_and_b32 v8, 31, v2")
    A("s_lshl_b32 s35, s31, 7")
    A("s_lshl_b32 s36, s28, 5")
    A("s_add_u32 s35, s35, s36")
    A("v_add_u32 v9, s35, v8")
    A("v_lshlrev_b32 v9, 1, v9")
    A("s_waitcnt lgkmcnt(0)")
    make_srd(A, 4, SZ["q"]); make_srd(A, 8, SZ["w1"]); make_srd(A, 12, SZ["b1"])
    make_srd(A, 16, 2048*8, add=WS_ST)
    A("buffer_load_ushort v18, v9, s[12:15], 0 offen")
    def issue(c):
        st = (c & 3) * STAGE
        for e in range(4):
            A(f"s_add_u32 m0, s34, {st + e*1024}")
            A("s_nop 0")
            A(f"buffer_load_dwordx4 v{10+e}, s[4:7], s32 offen lds")
        for e in range(4):
            A(f"s_add_u32 m0, s34, {st + 16384 + e*1024}")
            A("s_nop 0")
            A(f"buffer_load_dwordx4 v{14+e}, s[8:11], s33 offen lds")
        A("s_add_u32 s32, s32, 128")
        A(f"s_add_u32 s33, s33, {64*3072}")
    for c in range(3): issue(c)
    A("v_lshrrev_b32 v3, 5, v2")
    A("s_lshl_b32 s24, s28, 5")
    A("v_add_u32 v5, s24, v8")
    A("v_bfe_u32 v6, v5, 1, 3")
    A("v_lshlrev_b32 v7, 2, v3")
    A("v_xor_b32 v6, v6, v7")
    A("v_lshlrev_b32 v6, 4, v6")
    A("v_lshl_add_u32 v20, v5, 7, v6")
    for e in range(1, 4):
        A(f"v_xor_b32 v{20+e}, {16*e}, v20")
    for e in range(4):
        A(f"v_add_u32 v{24+e}, 0x10000, v{20+e}")
    A("v_lshrrev_b32 v3, 4, v2")
    A("v_and_b32 v4, 15, v2")
    A("v_lshrrev_b32 v5, 2, v4")
    A("v_xor_b32 v6, s28, v5")
    A("v_lshlrev_b32 v6, 2, v6")
    A("v_and_b32 v7, 1, v3")
    A("v_lshl_add_u32 v6, v7, 1, v6")
    A("v_bfe_u32 v7, v4, 1, 1")
    A("v_add_u32 v6, v6, v7")
    A("v_lshlrev_b32 v6, 4, v6")
    A("v_and_b32 v7, 1, v4")
    A("v_lshl_add_u32 v6, v7, 3, v6")
    A("v_lshrrev_b32 v7, 1, v3")
    A("v_lshl_add_u32 v5, v7, 3, v5")
    A("v_lshl_add_u32 v28, v5, 8, v6")
    A("v_add_u32 v28, 16384, v28")
    A("v_add_u32 v29, 0x10000, v28")
    for r in range(30, 36): A(f"v_mov_b32 v{r}, 0")
    A("s_mov_b32 s37, 0x3f803f80")
    for c in range(10):
        n_out = 16 if c <= 7 else (8 if c == 8 else 0)
        A(f"s_waitcnt vmcnt({n_out})")
        A("s_barrier")
        if c + 3 < 10: issue(c + 3)
        st = c & 3
        hi = st >> 1; off = (st & 1) * STAGE
        xb = 24 if hi else 20; wb = 29 if hi else 28
        for e in range(4):
            A(f"ds_read_b128 {v(40+4*e,4)}, v{xb+e} offset:{off}")
        for s_ in range(4):
            for h in range(2):
                A(f"ds_read_b64_tr_b16 {v(56+4*s_+2*h,2)}, v{wb} offset:{off + s_*4096 + h*1024}")
        for e in range(4):
            A(f"s_waitcnt lgkmcnt({11-e})")
            for d in range(4):
                r = 40 + 4*e + d
                A(f"v_dot2_f32_bf16 v{30 + 3*(d&1)}, v{r}, s37, v{30 + 3*(d&1)}")
                A(f"v_dot2_f32_bf16 v{31 + 3*(d&1)}, v{r}, v{r}, v{31 + 3*(d&1)}")
        for s_ in range(4):
            A(f"s_waitcnt lgkmcnt({6-2*s_})")
            for d in range(4):
                r = 56 + 4*s_ + d
                A(f"v_dot2_f32_bf16 v{32 + 3*(d&1)}, v{r}, s37, v{32 + 3*(d&1)}")
    A("s_nop 3")
    A("v_add_f32 v30, v30, v33"); A("v_add_f32 v31, v31, v34"); A("v_add_f32 v32, v32, v35")
    A("v_mov_b32 v33, v30"); A("v_mov_b32 v34, v31"); A("v_mov_b32 v35, v32")
    A("s_nop 1")
    A("v_permlane32_swap_b32 v30, v33"); A("v_permlane32_swap_b32 v31, v34"); A("v_permlane32_swap_b32 v32, v35")
    A("s_nop 1")
    A("v_add_f32 v30, v30, v33"); A("v_add_f32 v31, v31, v34"); A("v_add_f32 v32, v32, v35")
    A("s_mov_b32 s38, 0x3acccccd")
    A("v_mul_f32 v30, s38, v30")
    A("v_mul_f32 v31, s38, v31")
    A("v_fma_f32 v31, -v30, v30, v31")
    A("v_max_f32 v31, 0, v31")
    A("v_cvt_pk_bf16_f32 v36, v30, v31")
    A("v_and_b32 v37, 0xffff0000, v36")
    A("v_add_f32 v37, 0x3727c5ac, v37")
    A("v_cvt_pk_bf16_f32 v37, v37, v37")
    A("v_and_b32 v37, 0xffff0000, v37")
    A("v_sqrt_f32 v37, v37")
    A("s_nop 0")
    A("v_cvt_pk_bf16_f32 v37, v37, v37")
    A("v_and_b32 v38, 0xffff0000, v37")
    A("v_rcp_f32 v39, v38")
    A("v_lshlrev_b32 v38, 16, v36")
    A("v_and_b32 v40, 0xffff, v36")
    A("v_xor_b32 v40, 0x8000, v40")
    A("v_lshl_or_b32 v40, v40, 16, v40")
    A("v_and_b32 v41, 0xffff, v37")
    A("v_mov_b32 v42, 0"); A("v_mov_b32 v43, 0")
    A("v_cvt_pk_bf16_f32 v44, v32, v32")
    A("v_and_b32 v45, 0xffff0000, v44")
    A("v_sub_f32 v45, v32, v45")
    A("v_cvt_pk_bf16_f32 v44, v32, v45")
    A("v_mov_b32 v45, v18")
    A("v_mov_b32 v46, 0"); A("v_mov_b32 v47, 0")
    A("v_cmp_gt_u32 vcc, 32, v2")
    A("s_nop 1")
    for r in (40, 41, 44, 45):
        A(f"v_cndmask_b32 v{r}, 0, v{r}, vcc")
    A("v_lshlrev_b32 v48, 4, v2")
    A("s_lshl_b32 s24, s28, 10")
    A(f"s_add_u32 s24, s24, {EXT}")
    A("v_add_u32 v48, s24, v48")
    A("ds_write_b128 v48, v[44:47]")
    A("ds_write_b128 v48, v[40:43] offset:4096")
    A("s_cmp_lg_u32 s31, 0")
    A(f"s_cbranch_scc1 {name}_nostat")
    A("s_lshl_b32 s24, s30, 7")
    A("s_lshl_b32 s25, s28, 5")
    A("s_add_u32 s24, s24, s25")
    A("v_add_u32 v49, s24, v8")
    A("v_lshlrev_b32 v49, 3, v49")
    A("v_mov_b32 v50, 0x80000000")
    A("v_cndmask_b32 v49, v50, v49, vcc")
    A("buffer_store_dwordx2 v[38:39], v49, s[16:19], 0 offen")
    A.label(f"{name}_nostat")
    A("s_waitcnt lgkmcnt(0)")
    A("s_barrier")
    A("s_endpgm")

def gemm1_consumer(A, name):
    load_ptr(A, 16, "ws")
    A("s_and_b32 s26, s29, 1")
    A("s_lshr_b32 s27, s29, 1")
    A("v_and_b32 v2, 63, v0")
    A("v_lshrrev_b32 v3, 4, v2")
    A("v_and_b32 v4, 15, v2")
    A("v_lshrrev_b32 v5, 2, v4")
    A("v_and_b32 v7, 1, v3")
    A("v_lshlrev_b32 v8, 1, v7")
    A("v_bfe_u32 v7, v4, 1, 1")
    A("v_add_u32 v8, v8, v7")
    A("v_lshlrev_b32 v8, 4, v8")
    A("v_and_b32 v7, 1, v4")
    A("v_lshl_add_u32 v8, v7, 3, v8")
    A("v_lshrrev_b32 v7, 1, v3")
    A("v_lshl_add_u32 v9, v7, 3, v5")
    A("v_lshl_add_u32 v8, v9, 8, v8")
    A("v_add_u32 v8, 16384, v8")
    A("s_lshl_b32 s24, s26, 1")
    for fi in range(2):
        A(f"s_add_u32 s25, s24, {fi}")
        A(f"v_xor_b32 v6, s25, v5")
        A(f"v_lshl_add_u32 v{10+fi}, v6, 6, v8")
        A(f"v_add_u32 v{12+fi}, 0x10000, v{10+fi}")
    A("v_and_b32 v3, 31, v2")
    A("s_lshl_b32 s24, s27, 6")
    A("v_add_u32 v3, s24, v3")
    A("v_lshrrev_b32 v4, 5, v2")
    A("v_bfe_u32 v5, v3, 1, 3")
    A("v_xor_b32 v5, v5, v4")
    A("v_lshlrev_b32 v5, 4, v5")
    A("v_lshl_add_u32 v14, v3, 7, v5")
    for s_ in range(1, 4):
        A(f"v_xor_b32 v{14+s_}, {32*s_}, v14")
    for s_ in range(4):
        A(f"v_add_u32 v{18+s_}, 0x10000, v{14+s_}")
    A("v_bfe_u32 v3, v2, 4, 1")
    A("v_lshlrev_b32 v3, 10, v3")
    A("v_and_b32 v4, 15, v2")
    A("v_lshl_add_u32 v3, v4, 4, v3")
    A("v_lshrrev_b32 v4, 5, v2")
    A("v_lshl_add_u32 v22, v4, 8, v3")
    A("v_lshlrev_b32 v23, 4, v2")
    A(f"v_add_u32 v23, {EXT}, v23")
    A("s_lshl_b32 s24, s26, 11")
    A("v_add_u32 v24, s24, v23")
    A("s_lshl_b32 s24, s27, 11")
    A("v_add_u32 v25, s24, v23")
    A("s_lshl_b32 s24, s30, 1")
    A("s_add_u32 s24, s24, s27")
    A("s_mul_i32 s24, s24, 48")
    A("s_lshl_b32 s25, s31, 2")
    A("s_add_u32 s24, s24, s25")
    A("s_lshl_b32 s25, s26, 1")
    A("s_add_u32 s24, s24, s25")
    A("s_lshl_b32 s40, s24, 12")
    A("s_add_u32 s41, s40, 4096")
    A("s_waitcnt lgkmcnt(0)")
    make_srd(A, 16, 32*48*4096, add=WS_H)
    ACC = 64
    FR = [128, 144, 160]
    def reads(c, s_, fs):
        st = c & 3; hi = st >> 1; off = (st & 1) * STAGE
        out = []
        base = FR[fs]
        for fi in range(2):
            va = (12 if hi else 10) + fi
            for h in range(2):
                out.append(f"ds_read_b64_tr_b16 {v(base+4*fi+2*h,2)}, v{va} offset:{off + s_*4096 + h*1024}")
        vb = (18 if hi else 14) + s_
        for ti in range(2):
            out.append(f"ds_read_b128 {v(base+8+4*ti,4)}, v{vb} offset:{off + ti*4096}")
        return out
    def mfmas(fs, first):
        base = FR[fs]
        out = []
        for fi in range(2):
            for ti in range(2):
                acc = v(ACC+(fi*2+ti)*16, 16)
                out.append(f"v_mfma_f32_32x32x16_bf16 {acc}, {v(base+4*fi,4)}, {v(base+8+4*ti,4)}, {'0' if first else acc}")
        return out
    steps = [(c, s_) for c in range(10) for s_ in range(4)]
    NS = len(steps)
    rd = 0
    for q in range(NS + 2):
        if q < NS:
            c, s_ = steps[q]
            if s_ == 0:
                A("s_waitcnt lgkmcnt(0)")
                A("s_barrier")
            R = reads(c, s_, q % 3)
        else:
            R = []
        if q >= 2:
            if q < NS and steps[q][1] == 0:
                pass
            elif q - 1 < NS:
                A("s_waitcnt lgkmcnt(6)")
            else:
                A("s_waitcnt lgkmcnt(0)")
            M = mfmas((q-2) % 3, q - 2 == 0)
        else:
            M = []
        k = 0
        for i, m in enumerate(M):
            A(m)
            for _ in range(2):
                if k < len(R): A(R[k]); k += 1
        while k < len(R):
            A(R[k]); k += 1
    A("s_barrier")
    base = FR[1]
    for fi in range(2):
        A(f"ds_read_b128 {v(base+4*fi,4)}, v24 offset:{1024*fi}")
    for ti in range(2):
        A(f"ds_read_b128 {v(base+8+4*ti,4)}, v25 offset:{4096 + 1024*ti}")
    A("s_waitcnt lgkmcnt(0)")
    for m in mfmas(1, False): A(m)
    A("s_nop 15")
    first = True
    for fi in range(2):
        for ti in range(2):
            a0 = ACC + (fi*2+ti)*16
            o = 176 + (fi*2+ti)*8
            for r in range(0, 16, 2):
                A(f"v_mul_f32 v{a0+r}, v{a0+r}, abs(v{a0+r})")
                A(f"v_mul_f32 v{a0+r+1}, v{a0+r+1}, abs(v{a0+r+1})")
                A(f"v_cvt_pk_bf16_f32 v{o+r//2}, v{a0+r}, v{a0+r+1}")
                A(f"v_pk_max_i16 v{o+r//2}, v{o+r//2}, 0")
            for cc in range(2):
                A(f"buffer_store_dwordx4 {v(o+4*cc,4)}, v22, s[16:19], s{40+fi} offen offset:{cc*512 + ti*2048}")
    A("s_endpgm")

def gen_gemm1(A, name="gemm1_kernel", n_wg=192):
    kstart(A, name)
    A(f"s_cmp_ge_u32 s2, {n_wg}")
    A(f"s_cbranch_scc1 {name}_end")
    gemm1_ids(A)
    A("v_lshrrev_b32 v1, 6, v0")
    A("s_nop 0")
    A("v_readfirstlane_b32 s29, v1")
    A("s_nop 3")
    A("s_cmp_ge_u32 s29, 4")
    A(f"s_cbranch_scc1 {name}_prod")
    gemm1_consumer(A, name)
    A.label(f"{name}_prod")
    A("s_sub_u32 s28, s29, 4")
    gemm1_producer(A, name)
    A.label(f"{name}_end")
    A("s_endpgm")
    return dict(vgpr=208, lds=LDS_G1)
```

```python
from asmlib import *

RED = 0
ZT = 61440
LDS_G2 = ZT + 10240

def gemm2_ids(A):
    A("s_and_b32 s20, s2, 7")
    A("s_lshr_b32 s21, s2, 3")
    A("s_lshr_b32 s22, s20, 1")
    A("s_lshl_b32 s22, s22, 3")
    A("s_and_b32 s23, s21, 7")
    A("s_add_u32 s30, s22, s23")
    A("s_and_b32 s22, s20, 1")
    A("s_lshl_b32 s22, s22, 2")
    A("s_lshr_b32 s23, s21, 3")
    A("s_add_u32 s31, s22, s23")

def gen_gemm2(A, name="gemm2_kernel", n_wg=256, DEPTH=4):
    kstart(A, name)
    A(f"s_cmp_ge_u32 s2, {n_wg}")
    A(f"s_cbranch_scc1 {name}_end")
    gemm2_ids(A)
    load_ptr(A, 4, "ws"); load_ptr(A, 8, "ws"); load_ptr(A, 12, "q"); load_ptr(A, 16, "ws")
    load_ptr(A, 44, "ws"); load_ptr(A, 48, "b2"); load_ptr(A, 52, "out")
    A("v_lshrrev_b32 v1, 6, v0")
    A("v_and_b32 v2, 63, v0")
    A("s_nop 0")
    A("v_readfirstlane_b32 s29, v1")
    A("v_lshlrev_b32 v3, 4, v2")
    A("v_add_u32 v4, 4096, v3")
    A("s_nop 1")
    A("s_mul_i32 s24, s29, 12")
    A("s_mul_i32 s25, s30, 48")
    A("s_add_u32 s25, s25, s24")
    A("s_lshl_b32 s32, s25, 12")
    A("s_mul_i32 s25, s31, 48")
    A("s_add_u32 s25, s25, s24")
    A("s_mul_i32 s33, s25, 5120")
    A("s_waitcnt lgkmcnt(0)")
    make_srd(A, 4, 32*48*4096, add=WS_H)
    make_srd(A, 8, 8*48*5120, add=WS_W2)
    make_srd(A, 12, SZ["q"])
    make_srd(A, 16, 640*4096, add=WS_Z)
    make_srd(A, 44, 2048*8, add=WS_ST)
    make_srd(A, 48, SZ["b2"])
    make_srd(A, 52, SZ["out"])
    ACC = 24
    FR0 = 104
    def loads(st):
        b = FR0 + 36*(st % DEPTH)
        out = []
        for tb in range(4):
            out.append(f"buffer_load_dwordx4 {v(b+4*tb,4)}, v3, s[4:7], s32 offen offset:{1024*tb}")
        for db in range(4):
            out.append(f"buffer_load_dwordx4 {v(b+16+4*db,4)}, v3, s[8:11], s33 offen offset:{1024*db}")
        out.append(f"buffer_load_dwordx4 {v(b+32,4)}, v4, s[8:11], s33 offen")
        out.append("s_add_u32 s32, s32, 4096")
        out.append("s_add_u32 s33, s33, 5120")
        return out
    A("v_and_b32 v5, 15, v2")
    A("v_lshrrev_b32 v8, 4, v2")
    A("s_lshl_b32 s24, s30, 6")
    A("s_lshl_b32 s25, s29, 4")
    A("s_add_u32 s24, s24, s25")
    A("v_add_u32 v5, s24, v5")
    A("v_lshlrev_b32 v9, 3, v5")
    A("s_movk_i32 s26, 1280")
    A("v_mul_lo_u32 v20, v5, s26")
    A("s_mul_i32 s27, s31, 160")
    A("v_lshlrev_b32 v21, 3, v8")
    A("v_add_u32 v21, s27, v21")
    A("v_add_u32 v20, v20, v21")
    A("buffer_load_dwordx2 v[6:7], v9, s[44:47], 0 offen")
    for db in range(5):
        A(f"buffer_load_dwordx2 {v(10+2*db,2)}, v20, s[12:15], 0 offen offset:{32*db}")
    A("v_lshrrev_b32 v22, 3, v2")
    A("v_lshlrev_b32 v22, 12, v22")
    A("v_and_b32 v23, 7, v2")
    A("v_lshl_add_u32 v22, v23, 4, v22")
    A("s_mul_i32 s34, s31, 327680")
    A("s_lshl_b32 s35, s30, 7")
    A("s_add_u32 s34, s34, s35")
    A("s_lshl_b32 s35, s29, 15")
    A("s_add_u32 s34, s34, s35")
    A("s_lshl_b32 s36, s29, 10")
    for k in range(3):
        if k == 2:
            A("s_cmp_ge_u32 s29, 2")
            A(f"s_cbranch_scc1 {name}_noz")
        A(f"s_add_u32 m0, s36, {ZT + 4096*k}")
        A(f"s_add_u32 s35, s34, {131072*k}")
        A("buffer_load_dwordx4 v22, s[16:19], s35 offen lds")
    A.label(f"{name}_noz")
    for st in range(DEPTH):
        for x in loads(st): A(x)
    NST = 12
    for st in range(NST):
        rem = min(NST - 1 - st, DEPTH - 1)
        A(f"s_waitcnt vmcnt({9*rem})")
        b = FR0 + 36*(st % DEPTH)
        for db in range(5):
            for tb in range(4):
                acc = v(ACC + (db*4+tb)*4, 4)
                A(f"v_mfma_f32_16x16x32_bf16 {acc}, {v(b+16+4*db,4)}, {v(b+4*tb,4)}, {'0' if st == 0 else acc}")
        if st + DEPTH < NST:
            for x in loads(st + DEPTH): A(x)
    for db in range(5):
        A(f"buffer_load_dwordx2 {v(104+2*db,2)}, v21, s[48:51], 0 offen offset:{32*db}")
    A("s_nop 7")
    for tb in range(4):
        lab = A.uid("g2skip")
        A(f"s_cmp_eq_u32 s29, {tb}")
        A(f"s_cbranch_scc1 {lab}")
        A(f"s_sub_u32 s24, s29, {tb+1}")
        A("s_and_b32 s24, s24, 3")
        A("s_mul_i32 s24, s24, 5120")
        A(f"s_add_u32 s24, s24, {RED + tb*15360}")
        A("v_add_u32 v5, s24, v3")
        for db in range(5):
            A(f"ds_write_b128 v5, {v(ACC+(db*4+tb)*4,4)} offset:{1024*db}")
        A.label(lab)
    for tb in range(4):
        lab = A.uid("g2own")
        A(f"s_cmp_lg_u32 s29, {tb}")
        A(f"s_cbranch_scc1 {lab}")
        for db in range(5):
            for r in range(4):
                A(f"v_mov_b32 v{116+4*db+r}, v{ACC+(db*4+tb)*4+r}")
        A.label(lab)
    A("s_waitcnt vmcnt(0) lgkmcnt(0)")
    A("s_barrier")
    A("s_mul_i32 s24, s29, 15360")
    A("v_add_u32 v5, s24, v3")
    for sp in range(3):
        for db in range(5):
            A(f"ds_read_b128 {v(24+20*sp+4*db,4)}, v5 offset:{RED + sp*5120 + db*1024}")
    A("v_and_b32 v8, 15, v2")
    A("v_lshrrev_b32 v9, 4, v2")
    A("v_lshrrev_b32 v22, 2, v8")
    A("v_lshl_add_u32 v22, v9, 2, v22")
    A("v_lshlrev_b32 v22, 7, v22")
    A("v_and_b32 v8, 3, v8")
    A("v_lshl_add_u32 v22, v8, 3, v22")
    A("s_lshl_b32 s24, s29, 5")
    A(f"s_add_u32 s24, s24, {ZT}")
    A("v_add_u32 v22, s24, v22")
    for db in range(5):
        A(f"ds_read_b64_tr_b16 {v(136+2*db,2)}, v22 offset:{2048*db}")
    A("s_waitcnt lgkmcnt(0)")
    for sp in range(3):
        for db in range(5):
            A(f"v_pk_add_f32 {v(116+4*db,2)}, {v(116+4*db,2)}, {v(24+20*sp+4*db,2)}")
            A(f"v_pk_add_f32 {v(116+4*db+2,2)}, {v(116+4*db+2,2)}, {v(24+20*sp+4*db+2,2)}")
    A("v_mul_f32 v8, v7, v7")
    A("v_mov_b32 v9, v8")
    A("v_mov_b32 v148, v6"); A("v_mov_b32 v149, v6")
    A("v_mov_b32 v150, v7"); A("v_mov_b32 v151, v7")
    A("s_mov_b32 s24, 0xbfb8aa3b")
    def unpack(dst, src):
        A(f"v_lshlrev_b32 v{dst}, 16, v{src}")
        A(f"v_and_b32 v{dst+1}, 0xffff0000, v{src}")
    def rnd(dst, tmp):
        A(f"v_cvt_pk_bf16_f32 v{tmp}, v{dst}, v{dst+1}")
        unpack(dst, tmp)
    for db in range(5):
        for hp in range(2):
            o = 116 + 4*db + 2*hp
            t = 24
            A(f"v_pk_mul_f32 {v(o,2)}, {v(o,2)}, v[8:9]")
            rnd(o, t)
            unpack(t+2, 104 + 2*db + hp)
            A(f"v_pk_add_f32 {v(o,2)}, {v(o,2)}, {v(t+2,2)}")
            rnd(o, t)
            A(f"v_mul_f32 v{t+2}, s24, v{o}")
            A(f"v_mul_f32 v{t+3}, s24, v{o+1}")
            A(f"v_exp_f32 v{t+2}, v{t+2}")
            A(f"v_exp_f32 v{t+3}, v{t+3}")
            A("s_nop 0")
            A(f"v_add_f32 v{t+2}, 1.0, v{t+2}")
            A(f"v_add_f32 v{t+3}, 1.0, v{t+3}")
            A(f"v_rcp_f32 v{t+2}, v{t+2}")
            A(f"v_rcp_f32 v{t+3}, v{t+3}")
            A("s_nop 0")
            A(f"v_pk_mul_f32 {v(o,2)}, {v(o,2)}, {v(t+2,2)}")
            rnd(o, t)
            unpack(t+4, 10 + 2*db + hp)
            A(f"v_pk_add_f32 {v(t+6,2)}, {v(t+4,2)}, v[148:149] neg_lo:[0,1] neg_hi:[0,1]")
            rnd(t+6, t)
            A(f"v_pk_mul_f32 {v(t+6,2)}, {v(t+6,2)}, v[150:151]")
            rnd(t+6, t)
            unpack(t+8, 136 + 2*db + hp)
            A(f"v_pk_mul_f32 {v(t+6,2)}, {v(t+6,2)}, {v(t+8,2)}")
            rnd(t+6, t)
            A(f"v_pk_mul_f32 {v(t+6,2)}, {v(t+6,2)}, {v(o,2)}")
            rnd(t+6, t)
            A(f"v_pk_add_f32 {v(t+6,2)}, {v(t+6,2)}, {v(t+4,2)}")
            A(f"v_cvt_pk_bf16_f32 v{152+2*db+hp}, v{t+6}, v{t+7}")
        A(f"buffer_store_dwordx2 {v(152+2*db,2)}, v20, s[52:55], 0 offen offset:{32*db}")
    A.label(f"{name}_end")
    A("s_endpgm")
    return dict(vgpr=max(FR0 + 36*DEPTH, 164), lds=LDS_G2)
```

```python
from asmlib import *

def gen_prep(A, name="prep_kernel", n_kv=320, n_w2=48):
    kstart(A, name)
    A(f"s_cmp_ge_u32 s2, {n_kv + n_w2}")
    A(f"s_cbranch_scc1 {name}_end")
    A(f"s_cmp_ge_u32 s2, {n_kv}")
    A(f"s_cbranch_scc1 {name}_w2")
    load_ptr(A, 4, "k"); load_ptr(A, 8, "v"); load_ptr(A, 12, "sk"); load_ptr(A, 16, "ws")
    A("s_mul_hi_u32 s20, s2, 0x1999999A")
    A("s_mul_i32 s21, s20, 10")
    A("s_sub_u32 s21, s2, s21")
    A("s_lshl_b32 s22, s20, 6")
    A("v_lshrrev_b32 v1, 3, v0")
    A("v_and_b32 v2, 7, v0")
    A("v_lshlrev_b32 v3, 1, v1")
    A("v_add_u32 v3, s22, v3")
    A("s_lshl_b32 s23, s21, 7")
    A("v_lshlrev_b32 v4, 4, v2")
    A("v_add_u32 v4, s23, v4")
    A("s_movk_i32 s24, 1280")
    A("v_mov_b32 v9, 0x80000000")
    for i in range(5):
        A(f"v_add_u32 v5, {i-3}, v3")
        A(f"v_mul_lo_u32 v6, v5, s24")
        A(f"v_add_u32 v6, v6, v4")
        A(f"v_cmp_gt_i32 vcc, 0, v5")
        A("s_nop 1")
        A(f"v_cndmask_b32 v{10+i}, v6, v9, vcc")
    A("v_mov_b32 v15, v13")
    A("s_lshl_b32 s25, s21, 9")
    A("v_lshlrev_b32 v7, 6, v2")
    A("v_add_u32 v7, s25, v7")
    A("s_waitcnt lgkmcnt(0)")
    make_srd(A, 4, SZ["k"]); make_srd(A, 8, SZ["v"]); make_srd(A, 12, SZ["sk"])
    make_srd(A, 16, 640*4096, add=WS_KV)
    for i in range(4):
        A(f"buffer_load_dwordx4 {v(44+4*i,4)}, v7, s[12:15], 0 offen offset:{16*i}")
    for i in range(5):
        A(f"buffer_load_dwordx4 {v(16+4*i,4)}, v{10+i}, s[4:7], 0 offen")
    A(f"buffer_load_dwordx4 {v(36,4)}, v15, s[8:11], 0 offen")
    A(f"buffer_load_dwordx4 {v(40,4)}, v15, s[8:11], 0 offen offset:1280")
    for tau in range(2):
        A(f"v_lshlrev_b32 v5, 1, v1")
        A(f"v_sub_u32 v5, {63 - tau}, v5")
        A(f"v_bfe_u32 v6, v5, 1, 1")
        A(f"v_bfe_u32 v8, v5, 3, 1")
        A(f"v_lshl_or_b32 v6, v8, 1, v6")
        A(f"v_lshlrev_b32 v6, 1, v6")
        A(f"v_xor_b32 v6, v6, v2")
        A(f"v_lshlrev_b32 v6, 4, v6")
        A(f"v_lshl_add_u32 v{60+tau}, v5, 7, v6")
    A("s_waitcnt vmcnt(7)")
    S = lambda j, cp: 64 + (j*4+cp)*2
    for cp in range(4):
        for hh in range(2):
            d0 = 44 + 2*(2*cp+hh)
            A(f"v_lshlrev_b32 v{S(0,cp)+hh}, 16, v{d0}")
            A(f"v_and_b32 v{S(1,cp)+hh}, 0xffff0000, v{d0}")
            A(f"v_lshlrev_b32 v{S(2,cp)+hh}, 16, v{d0+1}")
            A(f"v_and_b32 v{S(3,cp)+hh}, 0xffff0000, v{d0+1}")
    A("s_waitcnt vmcnt(0)")
    K = lambda i, cp: 96 + (i*4+cp)*2
    V = lambda t, cp: 136 + (t*4+cp)*2
    for i in range(5):
        for cp in range(4):
            A(f"v_lshlrev_b32 v{K(i,cp)}, 16, v{16+4*i+cp}")
            A(f"v_and_b32 v{K(i,cp)+1}, 0xffff0000, v{16+4*i+cp}")
    for t in range(2):
        for cp in range(4):
            A(f"v_lshlrev_b32 v{V(t,cp)}, 16, v{36+4*t+cp}")
            A(f"v_and_b32 v{V(t,cp)+1}, 0xffff0000, v{36+4*t+cp}")
    for tau in range(2):
        for cp in range(4):
            ac = 152 + 4*cp; tp = ac + 2; pk = 168 + cp
            A(f"v_pk_mul_f32 {v(ac,2)}, {v(K(tau,cp),2)}, {v(S(3,cp),2)}")
        for cp in range(4):
            ac = 152 + 4*cp; pk = 168 + cp
            A(f"v_cvt_pk_bf16_f32 v{pk}, v{ac}, v{ac+1}")
        for cp in range(4):
            ac = 152 + 4*cp; pk = 168 + cp
            A(f"v_lshlrev_b32 v{ac}, 16, v{pk}")
            A(f"v_and_b32 v{ac+1}, 0xffff0000, v{pk}")
        for step, j in ((1, 2), (2, 1), (3, 0)):
            for cp in range(4):
                tp = 152 + 4*cp + 2
                A(f"v_pk_mul_f32 {v(tp,2)}, {v(K(tau+step,cp),2)}, {v(S(j,cp),2)}")
            for cp in range(4):
                tp = 152 + 4*cp + 2; pk = 168 + cp
                A(f"v_cvt_pk_bf16_f32 v{pk}, v{tp}, v{tp+1}")
            for cp in range(4):
                tp = 152 + 4*cp + 2; pk = 168 + cp
                A(f"v_lshlrev_b32 v{tp}, 16, v{pk}")
                A(f"v_and_b32 v{tp+1}, 0xffff0000, v{pk}")
            for cp in range(4):
                ac = 152 + 4*cp; tp = ac + 2
                A(f"v_pk_add_f32 {v(ac,2)}, {v(ac,2)}, {v(tp,2)}")
            for cp in range(4):
                ac = 152 + 4*cp; pk = 168 + cp
                A(f"v_cvt_pk_bf16_f32 v{pk}, v{ac}, v{ac+1}")
            for cp in range(4):
                ac = 152 + 4*cp; pk = 168 + cp
                A(f"v_lshlrev_b32 v{ac}, 16, v{pk}")
                A(f"v_and_b32 v{ac+1}, 0xffff0000, v{pk}")
        for cp in range(4):
            ac = 152 + 4*cp
            A(f"v_pk_mul_f32 {v(ac,2)}, {v(ac,2)}, {v(V(tau,cp),2)}")
        for cp in range(4):
            ac = 152 + 4*cp
            A(f"v_cvt_pk_bf16_f32 v{172+4*tau+cp}, v{ac}, v{ac+1}")
        A(f"ds_write_b128 v{60+tau}, {v(172+4*tau,4)}")
    A("v_lshrrev_b32 v1, 6, v0")
    A("v_and_b32 v2, 63, v0")
    A("v_lshrrev_b32 v3, 4, v2")
    A("v_and_b32 v4, 15, v2")
    A("v_lshrrev_b32 v5, 2, v4")
    A("v_lshl_add_u32 v5, v3, 3, v5")
    A("v_bfe_u32 v6, v4, 3, 1")
    A("v_and_b32 v7, 1, v3")
    A("v_lshl_or_b32 v6, v7, 1, v6")
    A("v_lshlrev_b32 v6, 1, v6")
    A("v_bfe_u32 v7, v4, 1, 1")
    A("v_lshl_or_b32 v7, v1, 1, v7")
    A("v_xor_b32 v7, v7, v6")
    A("v_lshlrev_b32 v7, 4, v7")
    A("v_and_b32 v8, 1, v4")
    A("v_lshl_or_b32 v7, v8, 3, v7")
    A("v_lshl_add_u32 v9, v5, 7, v7")
    A("v_lshl_add_u32 v10, v1, 4, v4")
    A("v_and_b32 v11, 7, v4")
    A("v_xor_b32 v12, v3, v11")
    A("v_xor_b32 v13, 4, v12")
    A("v_lshlrev_b32 v12, 4, v12")
    A("v_lshlrev_b32 v13, 4, v13")
    A("v_lshl_add_u32 v12, v10, 7, v12")
    A("v_lshl_add_u32 v13, v10, 7, v13")
    A("s_waitcnt lgkmcnt(0)")
    A("s_barrier")
    A("ds_read_b64_tr_b16 v[16:17], v9")
    A("ds_read_b64_tr_b16 v[18:19], v9 offset:512")
    A("ds_read_b64_tr_b16 v[20:21], v9 offset:4096")
    A("ds_read_b64_tr_b16 v[22:23], v9 offset:4608")
    A("v_lshrrev_b32 v5, 3, v2")
    A("v_lshl_add_u32 v5, v1, 4, v5")
    A("v_and_b32 v6, 7, v2")
    A("v_lshlrev_b32 v7, 4, v6")
    A("v_lshl_add_u32 v14, v5, 7, v7")
    A("v_bfe_u32 v7, v2, 3, 3")
    A("v_xor_b32 v6, v6, v7")
    A("v_lshlrev_b32 v6, 4, v6")
    A("v_lshl_add_u32 v15, v5, 12, v6")
    A("s_lshl_b32 s26, s21, 18")
    A("s_sub_u32 s27, 1984, s22")
    A("s_lshl_b32 s27, s27, 1")
    A("s_add_u32 s26, s26, s27")
    A("s_waitcnt lgkmcnt(0)")
    A("ds_write_b128 v12, v[16:19] offset:8192")
    A("ds_write_b128 v13, v[20:23] offset:8192")
    A("s_waitcnt lgkmcnt(0)")
    A("ds_read_b128 v[24:27], v14 offset:8192")
    A("ds_read_b128 v[28:31], v14 offset:9216")
    A("v_add_u32 v8, 0x8000, v15")
    A("s_waitcnt lgkmcnt(1)")
    A("buffer_store_dwordx4 v[24:27], v15, s[16:19], s26 offen")
    A("s_waitcnt lgkmcnt(0)")
    A("buffer_store_dwordx4 v[28:31], v8, s[16:19], s26 offen")
    A("s_endpgm")
    A.label(f"{name}_w2")
    load_ptr(A, 4, "w2"); load_ptr(A, 16, "ws")
    A(f"s_sub_u32 s20, s2, {n_kv}")
    A("s_mul_i32 s21, s20, 40960")
    A("s_waitcnt lgkmcnt(0)")
    make_srd(A, 4, SZ["w2"]); make_srd(A, 16, 8*48*5*1024, add=WS_W2)
    PITCH = 1312
    for it in range(10):
        A(f"v_add_u32 v1, {256*it}, v0")
        A(f"v_mul_u32_u24 v2, 52429, v1")
        A(f"v_lshrrev_b32 v2, 22, v2")
        A(f"v_mul_u32_u24 v3, 80, v2")
        A(f"v_sub_u32 v3, v1, v3")
        A(f"v_lshlrev_b32 v3, 4, v3")
        A(f"v_lshlrev_b32 v4, 4, v1")
        A(f"buffer_load_dwordx4 {v(32+4*it,4)}, v4, s[4:7], s21 offen")
        A(f"v_mul_u32_u24 v2, {PITCH}, v2")
        A(f"v_add_u32 v{16+it}, v2, v3")
    for it in range(10):
        A(f"s_waitcnt vmcnt({9-it})")
        A(f"ds_write_b128 v{16+it}, {v(32+4*it,4)}")
    A("v_lshrrev_b32 v1, 6, v0")
    A("v_and_b32 v2, 63, v0")
    A("v_lshrrev_b32 v3, 4, v2")
    A("v_and_b32 v4, 15, v2")
    A("v_lshrrev_b32 v5, 1, v3")
    A("v_lshlrev_b32 v5, 4, v5")
    A("v_and_b32 v6, 1, v3")
    A("v_lshl_add_u32 v5, v6, 2, v5")
    A("v_lshrrev_b32 v6, 2, v4")
    A("v_add_u32 v5, v5, v6")
    A(f"v_mul_u32_u24 v5, {PITCH}, v5")
    A("v_and_b32 v6, 3, v4")
    A("v_lshl_add_u32 v5, v6, 3, v5")
    A("v_mul_u32_u24 v6, 320, v1")
    A("v_add_u32 v5, v5, v6")
    A("v_lshlrev_b32 v7, 4, v2")
    A("s_nop 0")
    A("v_readfirstlane_b32 s22, v1")
    A("s_waitcnt lgkmcnt(0)")
    A("s_barrier")
    for e in range(10):
        A(f"ds_read_b64_tr_b16 {v(32+4*e,2)}, v5 offset:{32*e}")
        A(f"ds_read_b64_tr_b16 {v(34+4*e,2)}, v5 offset:{32*e + 8*PITCH}")
    A("s_mul_i32 s23, s22, 491520")
    A("s_mul_i32 s24, s20, 5120")
    A("s_add_u32 s23, s23, s24")
    for e in range(10):
        A(f"s_add_u32 s24, s23, {(e//5)*245760 + (e%5)*1024}")
        if e == 0: A("s_waitcnt lgkmcnt(0)")
        A(f"buffer_store_dwordx4 {v(32+4*e,4)}, v7, s[16:19], s24 offen")
    A.label(f"{name}_end")
    A("s_endpgm")
    return dict(vgpr=184, lds=48*1024)
```

```python
import sys
from asmlib import *
from k_prep import gen_prep
from k_conv import gen_conv
from k_gemm1 import gen_gemm1
from k_gemm2 import gen_gemm2

HDR = open("recurrent_scan__ssm_conv_h3__dense_activation_squared_relu__prompt.s.ref").read().split("; Override launch")[0]

def build(kernels, launches):
    A = Asm()
    info = {}
    for name, fn in kernels:
        info[name] = fn(A, name)
    out = HDR
    for (name, grid, block) in launches:
        out += f"; @launch kernel={name} grid=({grid},1,1) block=({block},1,1) lds={info[name]['lds']}\n"
    out += '.amdgcn_target "amdgcn-amd-amdhsa--gfx950"\n.text\n'
    out += A.text()
    out += '.section .rodata,"a"\n'
    for name, _ in kernels:
        out += kdesc(name, info[name]["vgpr"])
    return out

if __name__ == "__main__":
    ks = [("prep_kernel", gen_prep), ("gemm1_kernel", gen_gemm1), ("conv_kernel", gen_conv), ("gemm2_kernel", gen_gemm2)]
    ls = [("prep_kernel", 368, 256), ("gemm1_kernel", 192, 512), ("conv_kernel", 160, 256), ("gemm2_kernel", 256, 256)]
    txt = build(ks, ls)
    open(sys.argv[1] if len(sys.argv) > 1 else "v1.s", "w").write(txt)
```

```python
class Asm:
    def __init__(self):
        self.lines = []
        self._uid = 0
    def __call__(self, s=""):
        for l in s.split("\n"):
            l = l.strip()
            if l:
                self.lines.append("    " + l)
    def label(self, l):
        self.lines.append(l + ":")
    def raw(self, s):
        self.lines.append(s)
    def comment(self, s):
        self.lines.append("    ; " + s)
    def uid(self, p="L"):
        self._uid += 1
        return f"{p}_{self._uid}"
    def text(self):
        return "\n".join(self.lines) + "\n"

def v(i, n=1):
    return f"v{i}" if n == 1 else f"v[{i}:{i+n-1}]"
def s(i, n=1):
    return f"s{i}" if n == 1 else f"s[{i}:{i+n-1}]"
def a(i, n=1):
    return f"a{i}" if n == 1 else f"a[{i}:{i+n-1}]"

def kstart(A, name):
    A.raw(f".globl {name}")
    A.raw(".p2align 8")
    A.raw(f".type {name},@function")
    A.label(name)

def kdesc(name, vgpr, sgpr=96, accum=None):
    if accum is None:
        accum = min(256, (vgpr + 3) // 4 * 4)
    return f""".p2align 6
.amdhsa_kernel {name}
  .amdhsa_next_free_vgpr {vgpr}
  .amdhsa_next_free_sgpr {sgpr}
  .amdhsa_accum_offset {accum}
  .amdhsa_group_segment_fixed_size 0
  .amdhsa_kernarg_size 112
  .amdhsa_user_sgpr_count 2
  .amdhsa_user_sgpr_kernarg_segment_ptr 1
  .amdhsa_system_sgpr_workgroup_id_x 1
  .amdhsa_float_denorm_mode_32 3
.end_amdhsa_kernel
"""

KA = dict(q=0, k=8, v=16, sk=24, ssm=32, D=40, x=48, w1=56, b1=64, w2=72, b2=80, out=88, dbg=96, ws=104)
S_, D_, F_ = 2048, 640, 1536
SZ = dict(q=S_*D_*2, k=S_*D_*2, v=S_*D_*2, sk=D_*4*2, ssm=D_*S_*2, D=D_*2, w1=D_*F_*2, b1=F_*2, w2=F_*D_*2, b2=D_*2, out=S_*D_*2)
WS_H   = 0
WS_W2  = WS_H + 32*48*4*1024
WS_KV  = WS_W2 + 8*48*5*1024
WS_Z   = WS_KV + 640*4096
WS_ST  = WS_Z + 640*4096
WS_END = WS_ST + 2048*8

def load_ptr(A, sreg, name):
    A(f"s_load_dwordx2 {s(sreg,2)}, s[0:1], {KA[name]}")

def make_srd(A, sreg, size, add=0):
    if add:
        A(f"s_add_u32 {s(sreg)}, {s(sreg)}, {add}")
        A(f"s_addc_u32 {s(sreg+1)}, {s(sreg+1)}, 0")
    A(f"s_and_b32 {s(sreg+1)}, {s(sreg+1)}, 0xffff")
    A(f"s_mov_b32 {s(sreg+2)}, {size}")
    A(f"s_mov_b32 {s(sreg+3)}, 0x00020000")

STAMPS = False
WS_TS = 24 << 20
def stamp(A, idx):
    if not STAMPS: return
    A(f"s_memtime s[{62}:{63}]")
    A("s_waitcnt lgkmcnt(0)")
    A(f"s_mov_b32 s{64+idx}, s62")
def stamp_rt(A, idx):
    if not STAMPS: return
    A(f"s_memrealtime s[{62}:{63}]")
    A("s_waitcnt lgkmcnt(0)")
    A(f"s_mov_b32 s{64+idx}, s62")
def stamp_flush(A, n, wave_sgpr):
    if not STAMPS: return
    A("s_load_dwordx2 s[56:57], s[0:1], 104")
    A("s_waitcnt lgkmcnt(0)")
    A(f"s_add_u32 s56, s56, {WS_TS}")
    A("s_addc_u32 s57, s57, 0")
    A("s_and_b32 s57, s57, 0xffff")
    A(f"s_mov_b32 s58, {1<<20}")
    A("s_mov_b32 s59, 0x00020000")
    A("s_lshl_b32 s60, s2, 3")
    A(f"s_add_u32 s60, s60, {wave_sgpr}")
    A("s_lshl_b32 s60, s60, 7")
    A("v_mov_b32 v0, 0")
    for i in range(n):
        A(f"v_mov_b32 v1, s{64+i}")
        A(f"buffer_store_dword v1, v0, s[56:59], s60 offen offset:{4*i}")
        A("s_nop 1")
```

```python
import sys, os
import asmlib
from asmlib import *

WS_CS  = WS_END
WS_FL  = (WS_CS + 12*5*128*4 + 4095) // 4096 * 4096
F_ST = 0
F_CS = 256
F_KV = 512
F_W2 = 1536
F_H  = 2048
F_Z  = 5120
FL_SZ = 8192
WS_END2 = WS_FL + FL_SZ

STAGE = 32768
EXT = 4*STAGE
COPY = 4160; UOFF = 4*COPY; USZ = 4608; WREG = UOFF + USZ
RED = 4*WREG
ZT = RED + 61440
LDS_TOTAL = ZT + 10240
MAXSPIN = 40000

S_WAVE = 29
S_NONCE = 28
S_FLSRD = 40
S_DBG = 44

def setup_flag_srds(A):
    load_ptr(A, S_FLSRD, "ws"); load_ptr(A, S_DBG, "dbg")
    A("s_waitcnt lgkmcnt(0)")
    make_srd(A, S_FLSRD, FL_SZ, add=WS_FL)
    make_srd(A, S_DBG, 256)

def spin_fail(A):
    A("v_mov_b32 v250, 4"); A("v_mov_b32 v251, 0xdead")
    A(f"buffer_store_dword v251, v250, {s(S_DBG,4)}, 0 offen sc1")

def get_nonce(A, vt):
    L = A.uid("nonce"); D = A.uid("nonced")
    A("s_mov_b32 s26, 0")
    A(f"v_mov_b32 v{vt}, 0")
    A.label(L)
    A(f"buffer_load_dword v{vt+1}, v{vt}, {s(S_DBG,4)}, 0 offen sc1")
    A("s_waitcnt vmcnt(0)")
    A(f"v_readfirstlane_b32 s{S_NONCE}, v{vt+1}")
    A("s_nop 3")
    A(f"s_cmp_lg_u32 s{S_NONCE}, 0")
    A(f"s_cbranch_scc1 {D}")
    A("s_sleep 1")
    A("s_add_u32 s26, s26, 1")
    A(f"s_cmp_lt_u32 s26, {MAXSPIN}")
    A(f"s_cbranch_scc1 {L}")
    spin_fail(A)
    A.label(D)

def poll_flags(A, voff, vt, nlanes):
    L = A.uid("poll"); D = A.uid("polld")
    A("s_mov_b32 s26, 0")
    A(f"s_mov_b64 s[48:49], exec")
    if nlanes < 64:
        A(f"s_mov_b64 exec, {hex((1 << nlanes) - 1)}" if nlanes <= 32 else f"s_mov_b64 exec, {hex((1 << nlanes) - 1)}")
    A.label(L)
    A(f"buffer_load_dword v{vt}, v{voff}, {s(S_FLSRD,4)}, 0 offen sc1")
    A("s_waitcnt vmcnt(0)")
    A(f"v_cmp_ne_u32 vcc, s{S_NONCE}, v{vt}")
    A("s_nop 4")
    A(f"s_cbranch_vccz {D}")
    A("s_sleep 1")
    A("s_add_u32 s26, s26, 1")
    A(f"s_cmp_lt_u32 s26, {MAXSPIN}")
    A(f"s_cbranch_scc1 {L}")
    spin_fail(A)
    A.label(D)
    A(f"s_mov_b64 exec, s[48:49]")

def signal_flag(A, soff_sgpr, vt, imm=0):
    A(f"v_mov_b32 v{vt}, s{S_NONCE}")
    A(f"v_mov_b32 v{vt+1}, 0")
    A("s_mov_b64 s[48:49], exec")
    A("s_mov_b64 exec, 1")
    A(f"buffer_store_dword v{vt}, v{vt+1}, {s(S_FLSRD,4)}, s{soff_sgpr} offen offset:{imm} sc1")
    A("s_mov_b64 exec, s[48:49]")

def unpack(A, dst, src):
    A(f"v_lshlrev_b32 v{dst}, 16, v{src}")
    A(f"v_and_b32 v{dst+1}, 0xffff0000, v{src}")

def g1_producer(A):
    P = 27
    A(f"s_sub_u32 s{P}, s{S_WAVE}, 4")
    load_ptr(A, 4, "q"); load_ptr(A, 8, "w1"); load_ptr(A, 12, "b1"); load_ptr(A, 16, "ws"); load_ptr(A, 20, "ws")
    A("v_and_b32 v2, 63, v0")
    A("v_lshrrev_b32 v3, 3, v2")
    A("v_and_b32 v4, 7, v2")
    A(f"s_lshl_b32 s24, s{P}, 5")
    A("s_movk_i32 s25, 1280")
    for e in range(4):
        A(f"v_add_u32 v5, s24, v3")
        if e: A(f"v_add_u32 v5, {8*e}, v5")
        A(f"v_bfe_u32 v6, v5, 1, 3")
        A(f"v_xor_b32 v6, v6, v4")
        A(f"v_lshlrev_b32 v6, 4, v6")
        A(f"v_mul_lo_u32 v7, v5, s25")
        A(f"v_add_u32 v{10+e}, v7, v6")
    A("v_lshrrev_b32 v3, 4, v2")
    A("v_and_b32 v4, 15, v2")
    A("v_lshlrev_b32 v6, 2, v3")
    A("v_xor_b32 v6, v6, v4")
    A("v_lshlrev_b32 v6, 4, v6")
    A(f"s_lshl_b32 s24, s{P}, 4")
    A("s_movk_i32 s25, 3072")
    for e in range(4):
        A(f"v_add_u32 v5, s24, v3")
        if e: A(f"v_add_u32 v5, {4*e}, v5")
        A(f"v_mul_lo_u32 v7, v5, s25")
        A(f"v_add_u32 v{14+e}, v7, v6")
    A("s_mul_i32 s32, s30, 163840")
    A("s_lshl_b32 s33, s31, 8")
    A(f"s_lshl_b32 s34, s{P}, 12")
    A("s_waitcnt lgkmcnt(0)")
    make_srd(A, 4, SZ["q"]); make_srd(A, 8, SZ["w1"])
    def issue(c):
        st = (c & 3) * STAGE
        for e in range(4):
            A(f"s_add_u32 m0, s34, {st + e*1024}")
            A("s_nop 0")
            A(f"buffer_load_dwordx4 v{10+e}, s[4:7], s32 offen lds")
            A(f"s_add_u32 m0, s34, {st + 16384 + e*1024}")
            A("s_nop 0")
            A(f"buffer_load_dwordx4 v{14+e}, s[8:11], s33 offen lds")
        A("s_add_u32 s32, s32, 128")
        A(f"s_add_u32 s33, s33, {64*3072}")
    for c in range(3): issue(c)
    make_srd(A, 12, SZ["b1"])
    make_srd(A, 16, 2048*8, add=WS_ST)
    make_srd(A, 20, 12*5*128*4, add=WS_CS)
    setup_flag_srds(A)
    for c in range(10):
        n_out = 16 if c <= 7 else (8 if c == 8 else 0)
        A(f"s_waitcnt vmcnt({n_out})")
        stamp(A, 2 + 2*c)
        A("s_barrier")
        stamp(A, 3 + 2*c)
        if c + 3 < 10: issue(c + 3)
    get_nonce(A, 20)
    A("v_and_b32 v8, 31, v2")
    A(f"s_lshl_b32 s24, s30, 2")
    A(f"s_add_u32 s24, s24, s{P}")
    A("s_lshl_b32 s24, s24, 2")
    A(f"s_add_u32 s24, s24, {F_ST}")
    A("s_mul_i32 s25, s31, 20")
    A(f"s_add_u32 s25, s25, {F_CS - 4}")
    A("v_lshlrev_b32 v20, 2, v2")
    A("v_add_u32 v20, s25, v20")
    A("v_mov_b32 v21, s24")
    A("v_cmp_eq_u32 vcc, 0, v2")
    A("s_nop 1")
    A("v_cndmask_b32 v20, v20, v21, vcc")
    poll_flags(A, 20, 21, 6)
    A(f"s_lshl_b32 s24, s30, 7")
    A(f"s_lshl_b32 s25, s{P}, 5")
    A("s_add_u32 s24, s24, s25")
    A("v_add_u32 v9, s24, v8")
    A("v_lshlrev_b32 v9, 3, v9")
    A("buffer_load_dwordx2 v[30:31], v9, s[16:19], 0 offen sc1")
    A("s_mul_i32 s24, s31, 2560")
    A(f"s_lshl_b32 s25, s{P}, 7")
    A("s_add_u32 s24, s24, s25")
    A("v_lshlrev_b32 v9, 2, v8")
    for k in range(5):
        A(f"buffer_load_dword v{32+k}, v9, s[20:23], s24 offen offset:{512*k} sc1")
    A("s_lshl_b32 s24, s31, 7")
    A(f"s_lshl_b32 s25, s{P}, 5")
    A("s_add_u32 s24, s24, s25")
    A("v_add_u32 v9, s24, v8")
    A("v_lshlrev_b32 v9, 1, v9")
    A("buffer_load_ushort v45, v9, s[12:15], 0 offen")
    A("s_waitcnt vmcnt(0)")
    A("v_and_b32 v40, 0xffff, v30")
    A("v_xor_b32 v40, 0x8000, v40")
    A("v_lshl_or_b32 v40, v40, 16, v40")
    A("v_lshrrev_b32 v41, 16, v30")
    A("v_mov_b32 v42, 0"); A("v_mov_b32 v43, 0")
    A("v_add_f32 v32, v32, v33"); A("v_add_f32 v34, v34, v35"); A("v_add_f32 v32, v32, v36"); A("v_add_f32 v32, v32, v34")
    A("v_cvt_pk_bf16_f32 v44, v32, v32")
    A("v_and_b32 v46, 0xffff0000, v44")
    A("v_sub_f32 v46, v32, v46")
    A("v_cvt_pk_bf16_f32 v44, v32, v46")
    A("v_mov_b32 v46, 0"); A("v_mov_b32 v47, 0")
    A("v_cmp_gt_u32 vcc, 32, v2")
    A("s_nop 1")
    for r in (40, 41, 44, 45):
        A(f"v_cndmask_b32 v{r}, 0, v{r}, vcc")
    A("v_lshlrev_b32 v48, 4, v2")
    A(f"s_lshl_b32 s24, s{P}, 10")
    A(f"s_add_u32 s24, s24, {EXT}")
    A("v_add_u32 v48, s24, v48")
    A("ds_write_b128 v48, v[44:47]")
    A("ds_write_b128 v48, v[40:43] offset:4096")
    A("s_waitcnt lgkmcnt(0)")
    stamp(A, 22)
    A("s_barrier")
    stamp(A, 23)

def g1_consumer(A):
    load_ptr(A, 16, "ws")
    A(f"s_and_b32 s34, s{S_WAVE}, 1")
    A(f"s_lshr_b32 s35, s{S_WAVE}, 1")
    A("v_and_b32 v2, 63, v0")
    A("v_lshrrev_b32 v3, 4, v2")
    A("v_and_b32 v4, 15, v2")
    A("v_lshrrev_b32 v5, 2, v4")
    A("v_and_b32 v7, 1, v3")
    A("v_lshlrev_b32 v8, 1, v7")
    A("v_bfe_u32 v7, v4, 1, 1")
    A("v_add_u32 v8, v8, v7")
    A("v_lshlrev_b32 v8, 4, v8")
    A("v_and_b32 v7, 1, v4")
    A("v_lshl_add_u32 v8, v7, 3, v8")
    A("v_lshrrev_b32 v7, 1, v3")
    A("v_lshl_add_u32 v9, v7, 3, v5")
    A("v_lshl_add_u32 v8, v9, 8, v8")
    A("v_add_u32 v8, 16384, v8")
    A("s_lshl_b32 s24, s34, 1")
    for fi in range(2):
        A(f"s_add_u32 s25, s24, {fi}")
        A(f"v_xor_b32 v6, s25, v5")
        A(f"v_lshl_add_u32 v{10+fi}, v6, 6, v8")
        A(f"v_add_u32 v{12+fi}, 0x10000, v{10+fi}")
    A("v_and_b32 v3, 31, v2")
    A("s_lshl_b32 s24, s35, 6")
    A("v_add_u32 v3, s24, v3")
    A("v_lshrrev_b32 v4, 5, v2")
    A("v_bfe_u32 v5, v3, 1, 3")
    A("v_xor_b32 v5, v5, v4")
    A("v_lshlrev_b32 v5, 4, v5")
    A("v_lshl_add_u32 v14, v3, 7, v5")
    for s_ in range(1, 4):
        A(f"v_xor_b32 v{14+s_}, {32*s_}, v14")
    for s_ in range(4):
        A(f"v_add_u32 v{18+s_}, 0x10000, v{14+s_}")
    A("v_bfe_u32 v3, v2, 4, 1")
    A("v_lshlrev_b32 v3, 10, v3")
    A("v_and_b32 v4, 15, v2")
    A("v_lshl_add_u32 v3, v4, 4, v3")
    A("v_lshrrev_b32 v4, 5, v2")
    A("v_lshl_add_u32 v22, v4, 8, v3")
    A("v_lshlrev_b32 v23, 4, v2")
    A(f"v_add_u32 v23, {EXT}, v23")
    A("s_lshl_b32 s24, s34, 11")
    A("v_add_u32 v24, s24, v23")
    A("s_lshl_b32 s24, s35, 11")
    A("v_add_u32 v25, s24, v23")
    A("s_lshl_b32 s24, s30, 1")
    A("s_add_u32 s24, s24, s35")
    A("s_mul_i32 s33, s24, 24")
    A("s_mul_i32 s24, s24, 48")
    A("s_lshl_b32 s25, s31, 2")
    A("s_add_u32 s24, s24, s25")
    A("s_lshl_b32 s25, s34, 1")
    A("s_add_u32 s24, s24, s25")
    A("s_lshl_b32 s36, s24, 12")
    A("s_add_u32 s37, s36, 4096")
    A("s_lshl_b32 s25, s31, 1")
    A("s_add_u32 s33, s33, s25")
    A("s_add_u32 s33, s33, s34")
    A("s_lshl_b32 s33, s33, 2")
    A(f"s_add_u32 s33, s33, {F_H}")
    A("s_waitcnt lgkmcnt(0)")
    make_srd(A, 16, 32*48*4096, add=WS_H)
    setup_flag_srds(A)
    skip = A.uid("nn")
    A(f"s_or_b32 s24, s2, s{S_WAVE}")
    A("s_cmp_lg_u32 s24, 0")
    A(f"s_cbranch_scc1 {skip}")
    A("s_memrealtime s[24:25]")
    A("s_waitcnt lgkmcnt(0)")
    A("s_or_b32 s24, s24, 1")
    A("v_mov_b32 v26, s24"); A("v_mov_b32 v27, 0")
    A("s_mov_b64 exec, 1")
    A(f"buffer_store_dword v26, v27, {s(S_DBG,4)}, 0 offen sc1")
    A("s_mov_b64 exec, -1")
    A.label(skip)
    ACC = 64
    FR = [128, 144, 160]
    def reads(c, s_, fs):
        st = c & 3; hi = st >> 1; off = (st & 1) * STAGE
        out = []
        base = FR[fs]
        for fi in range(2):
            va = (12 if hi else 10) + fi
            for h in range(2):
                out.append(f"ds_read_b64_tr_b16 {v(base+4*fi+2*h,2)}, v{va} offset:{off + s_*4096 + h*1024}")
        vb = (18 if hi else 14) + s_
        for ti in range(2):
            out.append(f"ds_read_b128 {v(base+8+4*ti,4)}, v{vb} offset:{off + ti*4096}")
        return out
    def mfmas(fs, first):
        base = FR[fs]
        out = []
        for fi in range(2):
            for ti in range(2):
                acc = v(ACC+(fi*2+ti)*16, 16)
                out.append(f"v_mfma_f32_32x32x16_bf16 {acc}, {v(base+4*fi,4)}, {v(base+8+4*ti,4)}, {'0' if first else acc}")
        return out
    steps = [(c, s_) for c in range(10) for s_ in range(4)]
    NS = len(steps)
    for q in range(NS + 2):
        if q < NS:
            c, s_ = steps[q]
            if s_ == 0:
                A("s_waitcnt lgkmcnt(0)")
                stamp(A, 2 + 2*c)
                A("s_barrier")
                stamp(A, 3 + 2*c)
            R = reads(c, s_, q % 3)
        else:
            R = []
        if q >= 2:
            if q < NS and steps[q][1] == 0: pass
            elif q - 1 < NS: A("s_waitcnt lgkmcnt(6)")
            else: A("s_waitcnt lgkmcnt(0)")
            M = mfmas((q-2) % 3, q - 2 == 0)
        else:
            M = []
        k = 0
        for i, m in enumerate(M):
            A(m)
            for _ in range(2):
                if k < len(R): A(R[k]); k += 1
        while k < len(R):
            A(R[k]); k += 1
    get_nonce(A, 26)
    stamp(A, 22)
    A("s_barrier")
    stamp(A, 23)
    base = FR[1]
    for fi in range(2):
        A(f"ds_read_b128 {v(base+4*fi,4)}, v24 offset:{1024*fi}")
    for ti in range(2):
        A(f"ds_read_b128 {v(base+8+4*ti,4)}, v25 offset:{4096 + 1024*ti}")
    A("s_waitcnt lgkmcnt(0)")
    for m in mfmas(1, False): A(m)
    A("s_nop 15")
    for fi in range(2):
        for ti in range(2):
            a0 = ACC + (fi*2+ti)*16
            o = 176 + (fi*2+ti)*8
            for r in range(0, 16, 2):
                A(f"v_mul_f32 v{a0+r}, v{a0+r}, abs(v{a0+r})")
                A(f"v_mul_f32 v{a0+r+1}, v{a0+r+1}, abs(v{a0+r+1})")
                A(f"v_cvt_pk_bf16_f32 v{o+r//2}, v{a0+r}, v{a0+r+1}")
                A(f"v_pk_max_i16 v{o+r//2}, v{o+r//2}, 0")
            for cc in range(2):
                A(f"buffer_store_dwordx4 {v(o+4*cc,4)}, v22, s[16:19], s{36+fi} offen offset:{cc*512 + ti*2048} sc1")
    stamp(A, 24)
    A("s_waitcnt vmcnt(0)")
    signal_flag(A, 33, 26)
    stamp(A, 25)

def helper(A):
    J = 30
    A(f"s_sub_u32 s{J}, s2, 192")
    load_ptr(A, 4, "q"); load_ptr(A, 8, "w1"); load_ptr(A, 12, "ws"); load_ptr(A, 16, "ws")
    A("v_and_b32 v2, 63, v0")
    A("v_lshrrev_b32 v3, 4, v2")
    A("v_and_b32 v4, 15, v2")
    A(f"s_lshl_b32 s24, s{J}, 5")
    A(f"s_lshl_b32 s25, s{S_WAVE}, 2")
    A("s_add_u32 s24, s24, s25")
    A("v_add_u32 v5, s24, v3")
    A("s_movk_i32 s25, 1280")
    A("v_mul_lo_u32 v6, v5, s25")
    A("v_lshl_add_u32 v6, v4, 4, v6")
    A("v_lshlrev_b32 v7, 3, v5")
    A(f"s_mul_hi_u32 s32, s{J}, 0x33333334")
    A("s_mul_i32 s33, s32, 5")
    A(f"s_sub_u32 s33, s{J}, s33")
    A("s_lshl_b32 s24, s33, 7")
    A(f"s_lshl_b32 s25, s{S_WAVE}, 4")
    A("s_add_u32 s24, s24, s25")
    A("v_add_u32 v8, s24, v3")
    A("s_movk_i32 s25, 3072")
    A("v_mul_lo_u32 v8, v8, s25")
    A("v_lshl_add_u32 v8, v4, 4, v8")
    A("s_lshl_b32 s34, s32, 8")
    A("s_waitcnt lgkmcnt(0)")
    make_srd(A, 4, SZ["q"]); make_srd(A, 8, SZ["w1"])
    for e in range(5):
        A(f"buffer_load_dwordx4 {v(16+4*e,4)}, v6, s[4:7], 0 offen offset:{256*e}")
    for e in range(4):
        A(f"s_add_u32 s35, s34, {4*3072*e}")
        A(f"buffer_load_dwordx4 {v(36+4*e,4)}, v8, s[8:11], s35 offen")
    make_srd(A, 12, 2048*8, add=WS_ST)
    make_srd(A, 16, 12*5*128*4, add=WS_CS)
    setup_flag_srds(A)
    A("v_mov_b32 v52, 0"); A("v_mov_b32 v53, 0"); A("v_mov_b32 v54, 0"); A("v_mov_b32 v55, 0")
    A("v_lshlrev_b32 v56, 4, v2")
    z = A.uid("z")
    A(f"s_cmp_lg_u32 s{S_WAVE}, 0")
    A(f"s_cbranch_scc1 {z}")
    A("ds_write_b128 v56, v[52:55]")
    A.label(z)
    A("s_mov_b32 s37, 0x3f803f80")
    A("v_mov_b32 v57, 0"); A("v_mov_b32 v58, 0"); A("v_mov_b32 v59, 0"); A("v_mov_b32 v60, 0")
    A("s_waitcnt vmcnt(4)")
    stamp(A, 5)
    for r in range(16, 36):
        a_ = 57 + 2*(r & 1)
        A(f"v_dot2_f32_bf16 v{a_}, v{r}, s37, v{a_}")
        A(f"v_dot2_f32_bf16 v{a_+1}, v{r}, v{r}, v{a_+1}")
    A("s_nop 3")
    A("v_add_f32 v57, v57, v59"); A("v_add_f32 v58, v58, v60")
    for sh in (8, 4, 2, 1):
        A("s_nop 1")
        A(f"v_add_f32_dpp v57, v57, v57 row_ror:{sh} row_mask:0xf bank_mask:0xf")
        A(f"v_add_f32_dpp v58, v58, v58 row_ror:{sh} row_mask:0xf bank_mask:0xf")
    A("s_mov_b32 s38, 0x3acccccd")
    A("v_mul_f32 v57, s38, v57"); A("v_mul_f32 v58, s38, v58")
    A("v_fma_f32 v58, -v57, v57, v58")
    A("v_max_f32 v58, 0, v58")
    A("v_cvt_pk_bf16_f32 v59, v57, v58")
    A("v_and_b32 v60, 0xffff0000, v59")
    A("v_add_f32 v60, 0x3727c5ac, v60")
    A("v_cvt_pk_bf16_f32 v60, v60, v60")
    A("v_and_b32 v60, 0xffff0000, v60")
    A("v_sqrt_f32 v60, v60")
    A("s_nop 0")
    A("v_cvt_pk_bf16_f32 v60, v60, v60")
    A("v_and_b32 v60, 0xffff0000, v60")
    A("v_rcp_f32 v63, v60")
    A("v_and_b32 v62, 0xffff, v59")
    A("v_or_b32 v62, v62, v60")
    A("v_mov_b32 v61, 0x80000000")
    A("v_cmp_eq_u32 vcc, 0, v4")
    A("s_nop 1")
    A("v_cndmask_b32 v7, v61, v7, vcc")
    stamp(A, 6)
    A("s_waitcnt vmcnt(0)")
    A("buffer_store_dwordx2 v[62:63], v7, s[12:15], 0 offen sc1")
    for d in range(4):
        unpack(A, 64 + 2*d, 36 + d)
    for e in range(1, 4):
        for d in range(4):
            unpack(A, 72, 36 + 4*e + d)
            A(f"v_add_f32 v{64+2*d}, v{64+2*d}, v72")
            A(f"v_add_f32 v{65+2*d}, v{65+2*d}, v73")
    A("s_waitcnt lgkmcnt(0)")
    stamp(A, 7)
    A("s_barrier")
    A("v_lshlrev_b32 v74, 5, v4")
    for d in range(8):
        A(f"ds_add_f32 v74, v{64+d} offset:{4*d}")
    A("s_waitcnt vmcnt(0) lgkmcnt(0)")
    stamp(A, 8)
    A("s_barrier")
    stamp(A, 9)
    get_nonce(A, 75)
    stamp(A, 10)
    w0 = A.uid("w0")
    A(f"s_cmp_lg_u32 s{S_WAVE}, 0")
    A(f"s_cbranch_scc1 {w0}")
    A(f"s_lshl_b32 s24, s{J}, 2")
    signal_flag(A, 24, 75, imm=F_ST)
    A(f"s_cmp_ge_u32 s{J}, 60")
    A(f"s_cbranch_scc1 {w0}")
    A("ds_read_b128 v[76:79], v56")
    A(f"s_mul_i32 s24, s{J}, 512")
    A("v_mov_b32 v61, 0x80000000")
    A("v_cmp_gt_u32 vcc, 32, v2")
    A("s_nop 1")
    A("v_cndmask_b32 v80, v61, v56, vcc")
    A("s_waitcnt lgkmcnt(0)")
    A("buffer_store_dwordx4 v[76:79], v80, s[16:19], s24 offen sc1")
    A("s_waitcnt vmcnt(0)")
    A(f"s_lshl_b32 s24, s{J}, 2")
    signal_flag(A, 24, 75, imm=F_CS)
    A.label(w0)
    stamp(A, 2)
    load_ptr(A, 4, "k"); load_ptr(A, 8, "v"); load_ptr(A, 12, "sk"); load_ptr(A, 16, "ws")
    A(f"s_lshl_b32 s31, s{J}, 1")
    A("s_mov_b32 s39, 2")
    t2 = A.uid("t2")
    A(f"s_cmp_lt_u32 s{J}, 48")
    A(f"s_cbranch_scc1 {t2}")
    A(f"s_sub_u32 s31, s{J}, 48")
    A("s_lshl_b32 s31, s31, 2")
    A("s_add_u32 s31, s31, 96")
    A("s_mov_b32 s39, 4")
    A.label(t2)
    A("s_waitcnt lgkmcnt(0)")
    make_srd(A, 4, SZ["k"]); make_srd(A, 8, SZ["v"]); make_srd(A, 12, SZ["sk"])
    make_srd(A, 16, 640*4096, add=WS_KV)
    KL = A.uid("kvloop")
    A.label(KL)
    A("s_mul_hi_u32 s20, s31, 0x1999999A")
    A("s_mul_i32 s21, s20, 10")
    A("s_sub_u32 s21, s31, s21")
    A("s_lshl_b32 s22, s20, 7")
    A("v_lshrrev_b32 v1, 3, v0")
    A("v_and_b32 v2, 7, v0")
    A("v_lshlrev_b32 v3, 1, v1")
    A("v_add_u32 v3, s22, v3")
    A("s_lshl_b32 s23, s21, 7")
    A("v_lshlrev_b32 v4, 4, v2")
    A("v_add_u32 v4, s23, v4")
    A("s_movk_i32 s24, 1280")
    A("v_mov_b32 v9, 0x80000000")
    for i in range(5):
        A(f"v_add_u32 v5, {i-3}, v3")
        A(f"v_mul_lo_u32 v6, v5, s24")
        A(f"v_add_u32 v6, v6, v4")
        A(f"v_cmp_gt_i32 vcc, 0, v5")
        A("s_nop 1")
        A(f"v_cndmask_b32 v{10+i}, v6, v9, vcc")
    A("v_mov_b32 v15, v13")
    A("s_lshl_b32 s25, s21, 9")
    A("v_lshlrev_b32 v7, 6, v2")
    A("v_add_u32 v7, s25, v7")
    for i in range(4):
        A(f"buffer_load_dwordx4 {v(44+4*i,4)}, v7, s[12:15], 0 offen offset:{16*i}")
    for i in range(5):
        A(f"buffer_load_dwordx4 {v(16+4*i,4)}, v{10+i}, s[4:7], 0 offen")
    A(f"buffer_load_dwordx4 {v(36,4)}, v15, s[8:11], 0 offen")
    A(f"buffer_load_dwordx4 {v(40,4)}, v15, s[8:11], 0 offen offset:1280")
    T1 = 4096; T2 = T1 + 16384
    for tau in range(2):
        A(f"v_lshlrev_b32 v5, 1, v1")
        A(f"v_sub_u32 v5, {127 - tau}, v5")
        A(f"v_bfe_u32 v6, v5, 1, 1")
        A(f"v_bfe_u32 v8, v5, 3, 1")
        A(f"v_lshl_or_b32 v6, v8, 1, v6")
        A(f"v_lshlrev_b32 v6, 1, v6")
        A(f"v_xor_b32 v6, v6, v2")
        A(f"v_lshlrev_b32 v6, 4, v6")
        A(f"v_lshl_add_u32 v{60+tau}, v5, 7, v6")
    stamp(A, 11)
    A("s_waitcnt vmcnt(7)")
    S = lambda j, cp: 64 + (j*4+cp)*2
    for cp in range(4):
        for hh in range(2):
            d0 = 44 + 2*(2*cp+hh)
            A(f"v_lshlrev_b32 v{S(0,cp)+hh}, 16, v{d0}")
            A(f"v_and_b32 v{S(1,cp)+hh}, 0xffff0000, v{d0}")
            A(f"v_lshlrev_b32 v{S(2,cp)+hh}, 16, v{d0+1}")
            A(f"v_and_b32 v{S(3,cp)+hh}, 0xffff0000, v{d0+1}")
    A("s_waitcnt vmcnt(0)")
    stamp(A, 12)
    K = lambda i, cp: 96 + (i*4+cp)*2
    V = lambda t, cp: 136 + (t*4+cp)*2
    for i in range(5):
        for cp in range(4):
            unpack(A, K(i,cp), 16+4*i+cp)
    for t in range(2):
        for cp in range(4):
            unpack(A, V(t,cp), 36+4*t+cp)
    for tau in range(2):
        for cp in range(4):
            ac = 152 + 4*cp
            A(f"v_pk_mul_f32 {v(ac,2)}, {v(K(tau,cp),2)}, {v(S(3,cp),2)}")
        for cp in range(4):
            ac = 152 + 4*cp; pk = 168 + cp
            A(f"v_cvt_pk_bf16_f32 v{pk}, v{ac}, v{ac+1}")
        for cp in range(4):
            unpack(A, 152 + 4*cp, 168 + cp)
        for step, j in ((1, 2), (2, 1), (3, 0)):
            for cp in range(4):
                tp = 152 + 4*cp + 2
                A(f"v_pk_mul_f32 {v(tp,2)}, {v(K(tau+step,cp),2)}, {v(S(j,cp),2)}")
            for cp in range(4):
                tp = 152 + 4*cp + 2; pk = 168 + cp
                A(f"v_cvt_pk_bf16_f32 v{pk}, v{tp}, v{tp+1}")
            for cp in range(4):
                unpack(A, 152 + 4*cp + 2, 168 + cp)
            for cp in range(4):
                ac = 152 + 4*cp; tp = ac + 2
                A(f"v_pk_add_f32 {v(ac,2)}, {v(ac,2)}, {v(tp,2)}")
            for cp in range(4):
                ac = 152 + 4*cp; pk = 168 + cp
                A(f"v_cvt_pk_bf16_f32 v{pk}, v{ac}, v{ac+1}")
            for cp in range(4):
                unpack(A, 152 + 4*cp, 168 + cp)
        for cp in range(4):
            ac = 152 + 4*cp
            A(f"v_pk_mul_f32 {v(ac,2)}, {v(ac,2)}, {v(V(tau,cp),2)}")
        for cp in range(4):
            ac = 152 + 4*cp
            A(f"v_cvt_pk_bf16_f32 v{172+4*tau+cp}, v{ac}, v{ac+1}")
        A(f"ds_write_b128 v{60+tau}, {v(172+4*tau,4)} offset:{T1}")
    stamp(A, 13)
    A("v_lshrrev_b32 v1, 6, v0")
    A("v_and_b32 v2, 63, v0")
    A("v_lshrrev_b32 v3, 4, v2")
    A("v_and_b32 v4, 15, v2")
    A("v_and_b32 v16, 3, v1")
    A("v_lshrrev_b32 v17, 2, v1")
    A("v_lshrrev_b32 v5, 2, v4")
    A("v_lshl_add_u32 v5, v3, 3, v5")
    A("v_lshl_add_u32 v5, v17, 6, v5")
    A("v_bfe_u32 v6, v4, 3, 1")
    A("v_and_b32 v7, 1, v3")
    A("v_lshl_or_b32 v6, v7, 1, v6")
    A("v_lshlrev_b32 v6, 1, v6")
    A("v_bfe_u32 v7, v4, 1, 1")
    A("v_lshl_or_b32 v7, v16, 1, v7")
    A("v_xor_b32 v7, v7, v6")
    A("v_lshlrev_b32 v7, 4, v7")
    A("v_and_b32 v8, 1, v4")
    A("v_lshl_or_b32 v7, v8, 3, v7")
    A("v_lshl_add_u32 v9, v5, 7, v7")
    A("v_and_b32 v11, 7, v4")
    A("v_xor_b32 v12, v3, v11")
    A("v_xor_b32 v13, 4, v12")
    A("v_lshlrev_b32 v12, 4, v12")
    A("v_lshlrev_b32 v13, 4, v13")
    A("v_lshlrev_b32 v10, 11, v1")
    A("v_lshl_add_u32 v10, v4, 7, v10")
    A("v_add_u32 v12, v10, v12")
    A("v_add_u32 v13, v10, v13")
    A("s_waitcnt lgkmcnt(0)")
    A("s_barrier")
    A(f"ds_read_b64_tr_b16 v[16:17], v9 offset:{T1}")
    A(f"ds_read_b64_tr_b16 v[18:19], v9 offset:{T1+512}")
    A(f"ds_read_b64_tr_b16 v[20:21], v9 offset:{T1+4096}")
    A(f"ds_read_b64_tr_b16 v[22:23], v9 offset:{T1+4608}")
    A("v_lshrrev_b32 v5, 3, v2")
    A("v_and_b32 v6, 7, v2")
    A("v_lshlrev_b32 v7, 4, v6")
    A("v_lshl_add_u32 v7, v5, 7, v7")
    A("v_lshl_add_u32 v14, v1, 11, v7")
    A("v_xor_b32 v6, v6, v5")
    A("v_lshlrev_b32 v6, 4, v6")
    A("v_and_b32 v7, 3, v1")
    A("v_lshl_add_u32 v5, v7, 4, v5")
    A("v_lshl_add_u32 v15, v5, 12, v6")
    A("v_lshrrev_b32 v7, 2, v1")
    A("v_lshl_add_u32 v15, v7, 7, v15")
    A("s_lshl_b32 s26, s21, 18")
    A("s_sub_u32 s27, 1920, s22")
    A("s_lshl_b32 s27, s27, 1")
    A("s_add_u32 s36, s26, s27")
    A("s_waitcnt lgkmcnt(0)")
    A(f"ds_write_b128 v12, v[16:19] offset:{T2}")
    A(f"ds_write_b128 v13, v[20:23] offset:{T2}")
    A("s_waitcnt lgkmcnt(0)")
    A(f"ds_read_b128 v[24:27], v14 offset:{T2}")
    A(f"ds_read_b128 v[28:31], v14 offset:{T2+1024}")
    A("v_add_u32 v8, 0x8000, v15")
    A("s_waitcnt lgkmcnt(1)")
    A("buffer_store_dwordx4 v[24:27], v15, s[16:19], s36 offen sc1")
    A("s_waitcnt lgkmcnt(0)")
    A("buffer_store_dwordx4 v[28:31], v8, s[16:19], s36 offen sc1")
    stamp(A, 14)
    A("s_waitcnt vmcnt(0)")
    stamp(A, 15)
    A("s_barrier")
    w1 = A.uid("w1")
    A(f"s_cmp_lg_u32 s{S_WAVE}, 0")
    A(f"s_cbranch_scc1 {w1}")
    A("s_lshl_b32 s24, s21, 4")
    A("s_add_u32 s24, s24, s20")
    A("s_lshl_b32 s24, s24, 2")
    signal_flag(A, 24, 16, imm=F_KV)
    A.label(w1)
    A("s_add_u32 s31, s31, 1")
    A("s_sub_u32 s39, s39, 1")
    A("s_cmp_lg_u32 s39, 0")
    A(f"s_cbranch_scc1 {KL}")
    stamp(A, 3)
    done = A.uid("hdone")
    A(f"s_cmp_ge_u32 s{J}, 48")
    A(f"s_cbranch_scc1 {done}")
    load_ptr(A, 4, "w2"); load_ptr(A, 16, "ws")
    A(f"s_mul_i32 s21, s{J}, 40960")
    A("s_waitcnt lgkmcnt(0)")
    make_srd(A, 4, SZ["w2"]); make_srd(A, 16, 8*48*5*1024, add=WS_W2)
    PITCH = 1312
    for it in range(5):
        A(f"v_add_u32 v1, {512*it}, v0")
        A(f"v_mul_u32_u24 v2, 52429, v1")
        A(f"v_lshrrev_b32 v2, 22, v2")
        A(f"v_mul_u32_u24 v3, 80, v2")
        A(f"v_sub_u32 v3, v1, v3")
        A(f"v_lshlrev_b32 v3, 4, v3")
        A(f"v_lshlrev_b32 v4, 4, v1")
        A(f"buffer_load_dwordx4 {v(32+4*it,4)}, v4, s[4:7], s21 offen")
        A(f"v_mul_u32_u24 v2, {PITCH}, v2")
        A(f"v_add_u32 v{16+it}, v2, v3")
    for it in range(5):
        A(f"s_waitcnt vmcnt({4-it})")
        A(f"ds_write_b128 v{16+it}, {v(32+4*it,4)}")
    A("v_lshrrev_b32 v1, 6, v0")
    A("v_and_b32 v2, 63, v0")
    A("v_lshrrev_b32 v3, 4, v2")
    A("v_and_b32 v4, 15, v2")
    A("v_lshrrev_b32 v5, 1, v3")
    A("v_lshlrev_b32 v5, 4, v5")
    A("v_and_b32 v6, 1, v3")
    A("v_lshl_add_u32 v5, v6, 2, v5")
    A("v_lshrrev_b32 v6, 2, v4")
    A("v_add_u32 v5, v5, v6")
    A(f"v_mul_u32_u24 v5, {PITCH}, v5")
    A("v_and_b32 v6, 3, v4")
    A("v_lshl_add_u32 v5, v6, 3, v5")
    A("v_mul_u32_u24 v6, 160, v1")
    A("v_add_u32 v5, v5, v6")
    A("v_lshlrev_b32 v7, 4, v2")
    A("s_waitcnt lgkmcnt(0)")
    A("s_barrier")
    for e in range(5):
        A(f"ds_read_b64_tr_b16 {v(32+4*e,2)}, v5 offset:{32*e}")
        A(f"ds_read_b64_tr_b16 {v(34+4*e,2)}, v5 offset:{32*e + 8*PITCH}")
    A(f"s_mul_i32 s23, s{S_WAVE}, 245760")
    A(f"s_mul_i32 s24, s{J}, 5120")
    A("s_add_u32 s23, s23, s24")
    A("v_add_u32 v8, 4096, v7")
    A("s_waitcnt lgkmcnt(0)")
    for e in range(4):
        A(f"buffer_store_dwordx4 {v(32+4*e,4)}, v7, s[16:19], s23 offen offset:{1024*e} sc1")
    A(f"buffer_store_dwordx4 {v(48,4)}, v8, s[16:19], s23 offen sc1")
    A("s_waitcnt vmcnt(0)")
    A("s_barrier")
    w2 = A.uid("w2")
    A(f"s_cmp_lg_u32 s{S_WAVE}, 0")
    A(f"s_cbranch_scc1 {w2}")
    A(f"s_lshl_b32 s24, s{J}, 2")
    signal_flag(A, 24, 16, imm=F_W2)
    A.label(w2)
    A.label(done)
    A("s_waitcnt lgkmcnt(0)")
    A("s_barrier")
    stamp(A, 4)

def conv_wave(A):
    SW = 22; SD = 21
    load_ptr(A, 4, "ssm"); load_ptr(A, 8, "ws"); load_ptr(A, 12, "ws"); load_ptr(A, 16, "D")
    A("v_and_b32 v2, 63, v0")
    A(f"s_sub_u32 s20, s{S_WAVE}, 4")
    A("s_lshl_b32 s21, s2, 2")
    A("s_add_u32 s21, s21, s20")
    A(f"s_mul_i32 s22, s20, {WREG}")
    A("s_lshl_b32 s23, s21, 12")
    A("s_waitcnt lgkmcnt(0)")
    A("s_add_u32 s4, s4, s23"); A("s_addc_u32 s5, s5, 0")
    make_srd(A, 4, 4096)
    make_srd(A, 8, 640*4096, add=WS_KV)
    make_srd(A, 12, 640*4096, add=WS_Z)
    make_srd(A, 16, SZ["D"])
    A(f"s_lshl_b32 s24, s{SD}, 1")
    A("v_mov_b32 v3, s24")
    A("buffer_load_ushort v4, v3, s[16:19], 0 offen")
    A("v_lshlrev_b32 v5, 4, v2")
    A("v_mov_b32 v7, 0x80000000")
    A("v_add_u32 v6, -16, v5")
    A("v_cmp_eq_u32 vcc, 0, v2")
    A("s_nop 1")
    A("v_cndmask_b32 v8, v6, v7, vcc")
    for it in range(1, 4):
        A(f"v_add_u32 v{8+it}, {1024*it-16}, v5")
    A("v_mov_b32 v12, 4080")
    A("v_cndmask_b32 v12, v7, v12, vcc")
    for it in range(4):
        d = 16 + 6*it
        A(f"buffer_load_dwordx4 {v(d,4)}, v{8+it}, s[4:7], 0 offen")
        A(f"buffer_load_dwordx2 {v(d+4,2)}, v5, s[4:7], 0 offen offset:{1024*it}")
    A(f"buffer_load_dwordx4 {v(40,4)}, v12, s[4:7], 0 offen")
    A(f"v_mov_b32 v44, 0"); A(f"v_mov_b32 v45, 0")
    A("v_mov_b32 v46, 0"); A("v_mov_b32 v47, 0")
    A("v_lshlrev_b32 v13, 3, v2")
    A(f"v_add_u32 v13, s{SW}, v13")
    A(f"ds_write_b64 v13, v[46:47] offset:{UOFF+4096}")
    A(f"v_add_u32 v14, s{SW}, v5")
    A("v_mov_b32 v15, 4112")
    A("v_cndmask_b32 v15, 0, v15, vcc")
    A(f"v_add_u32 v15, s{SW}, v15")
    for it in range(5):
        d = 16 + 6*it
        A(f"s_waitcnt vmcnt({7 - 2*it if it < 4 else 0})")
        e = 48
        for k in range(5):
            A(f"v_alignbit_b32 v{e+k}, v{d+k+1}, v{d+k}, 16")
        if it == 4: A("s_mov_b64 exec, 3")
        adr = "v14" if it < 4 else "v15"
        off = 16 + 1024*it if it < 4 else 0
        A(f"ds_write_b128 {adr}, {v(e,4)} offset:{off}")
        A(f"v_mov_b32 v54, v{d+1}"); A(f"v_mov_b32 v55, v{d+2}"); A(f"v_mov_b32 v56, v{d+3}"); A(f"v_mov_b32 v57, v{d+4}")
        A(f"ds_write_b128 {adr}, {v(54,4)} offset:{off + COPY}")
        A(f"v_mov_b32 v58, v{e+1}"); A(f"v_mov_b32 v59, v{e+2}"); A(f"v_mov_b32 v60, v{e+3}"); A(f"v_mov_b32 v61, v{e+4}")
        A(f"ds_write_b128 {adr}, {v(58,4)} offset:{off + 2*COPY}")
        A(f"ds_write_b128 {adr}, {v(d+2,4)} offset:{off + 3*COPY}")
        if it == 4: A("s_mov_b64 exec, -1")
    stamp(A, 27)
    A(f"s_lshr_b32 s24, s{SD}, 6")
    A("s_lshl_b32 s24, s24, 6")
    A(f"s_add_u32 s24, s24, {F_KV}")
    A("v_lshlrev_b32 v16, 2, v2")
    A("v_add_u32 v16, s24, v16")
    poll_flags(A, 16, 17, 16)
    stamp(A, 28)
    for i in range(4):
        A(f"s_add_u32 s25, s23, {1024*i}")
        A(f"buffer_load_dwordx4 {v(16+4*i,4)}, v5, s[8:11], s25 offen sc1")
    A("v_and_b32 v6, 15, v2")
    A("v_lshrrev_b32 v7, 4, v2")
    A("v_and_b32 v8, 3, v6")
    A(f"v_mul_u32_u24 v8, {COPY}, v8")
    A("v_and_b32 v9, 12, v6")
    A("v_lshlrev_b32 v9, 1, v9")
    A("v_lshl_add_u32 v9, v7, 4, v9")
    A(f"v_add3_u32 v10, v8, v9, s{SW}")
    A("v_lshlrev_b32 v8, 5, v6")
    A("v_lshlrev_b32 v9, 4, v7")
    A("v_sub_u32 v9, v9, v8")
    A(f"v_add_u32 v9, {480 + UOFF}, v9")
    A(f"v_add_u32 v11, s{SW}, v9")
    A("v_lshlrev_b32 v9, 3, v7")
    A("v_add_u32 v12, v8, v9")
    A(f"v_sub_u32 v13, {504 + UOFF}, v12")
    A(f"v_add_u32 v13, s{SW}, v13")
    A("v_and_b32 v9, 1, v7")
    A("v_lshlrev_b32 v9, 9, v9")
    A("v_add_u32 v9, v9, v8")
    A("v_lshrrev_b32 v12, 1, v7")
    A("v_lshl_add_u32 v12, v12, 4, v9")
    for i in range(4):
        A(f"s_waitcnt vmcnt({3-i})")
        A(f"ds_write_b128 v14, {v(16+4*i,4)} offset:{UOFF + 1024*i}")
    A("s_waitcnt lgkmcnt(0)")
    SA = [64, 128]; SB = [96, 160]; ACC = 192
    def reads(r, st):
        out = []
        for i in range(8):
            out.append(f"ds_read_b64 {v(SA[st]+4*i,2)}, v10 offset:{64*r + 512*i}")
            out.append(f"ds_read_b128 {v(SB[st]+4*i,4)}, v11 offset:{512*(7-i) + 64*r}")
            out.append(f"ds_read_b64 {v(SA[st]+4*i+2,2)}, v10 offset:{64*r + 512*i + 8}")
        return out
    for x in reads(0, 0): A(x)
    for r in range(8):
        st = r & 1
        A("s_waitcnt lgkmcnt(0)")
        nxt = reads(r+1, 1-st) if r < 7 else []
        k = 0
        for i in range(8):
            for n in range(i, 8):
                c = "0" if (r == 0 and i == 0) else v(ACC+4*n,4)
                A(f"v_mfma_f32_16x16x32_bf16 {v(ACC+4*n,4)}, {v(SA[st]+4*i,4)}, {v(SB[st]+4*(n-i),4)}, {c}")
                if k < len(nxt):
                    A(nxt[k]); k += 1
    stamp(A, 29)
    for n in range(8):
        A(f"ds_read_b64 {v(64+2*n,2)}, v13 offset:{512*(7-n)}")
    A("v_lshlrev_b32 v4, 16, v4")
    A("v_mov_b32 v5, v4")
    A("s_nop 7")
    A("s_waitcnt lgkmcnt(0)")
    for n in range(8):
        k0 = 64 + 2*n; t = 96; a0 = ACC + 4*n
        A(f"v_and_b32 v{t}, 0xffff0000, v{k0+1}")
        A(f"v_lshlrev_b32 v{t+1}, 16, v{k0+1}")
        A(f"v_and_b32 v{t+2}, 0xffff0000, v{k0}")
        A(f"v_lshlrev_b32 v{t+3}, 16, v{k0}")
        A(f"v_pk_mul_f32 {v(t,2)}, {v(t,2)}, v[4:5]")
        A(f"v_pk_mul_f32 {v(t+2,2)}, {v(t+2,2)}, v[4:5]")
        A(f"v_cvt_pk_bf16_f32 v{t+4}, v{t}, v{t+1}")
        A(f"v_cvt_pk_bf16_f32 v{t+5}, v{t+2}, v{t+3}")
        A(f"v_cvt_pk_bf16_f32 v{t+6}, v{a0}, v{a0+1}")
        A(f"v_cvt_pk_bf16_f32 v{t+7}, v{a0+2}, v{a0+3}")
        unpack(A, t, t+4); unpack(A, t+2, t+5); unpack(A, t+8, t+6); unpack(A, t+10, t+7)
        A(f"v_pk_add_f32 {v(t,2)}, {v(t,2)}, {v(t+8,2)}")
        A(f"v_pk_add_f32 {v(t+2,2)}, {v(t+2,2)}, {v(t+10,2)}")
        o = 112 + 4*(n//2) + 2*(n & 1)
        A(f"v_cvt_pk_bf16_f32 v{o}, v{t}, v{t+1}")
        A(f"v_cvt_pk_bf16_f32 v{o+1}, v{t+2}, v{t+3}")
        if n & 1:
            b = 112 + 4*(n//2)
            A("s_nop 1")
            A(f"v_permlane16_swap_b32 v{b}, v{b+2}")
            A(f"v_permlane16_swap_b32 v{b+1}, v{b+3}")
            A(f"buffer_store_dwordx4 {v(b,4)}, v12, s[12:15], s23 offen offset:{512*(n-1)} sc1")
    A("s_waitcnt vmcnt(0)")
    A(f"s_lshl_b32 s24, s{SD}, 2")
    signal_flag(A, 24, 16, imm=0) if False else None
    A(f"s_add_u32 s24, s24, {F_Z}")
    signal_flag(A, 24, 16)
    stamp(A, 30)

def gemm2_wave(A, DEPTH=4):
    A("s_and_b32 s20, s2, 7")
    A("s_lshr_b32 s21, s2, 3")
    A("s_lshr_b32 s22, s20, 1")
    A("s_lshl_b32 s22, s22, 3")
    A("s_and_b32 s23, s21, 7")
    A("s_add_u32 s30, s22, s23")
    A("s_and_b32 s22, s20, 1")
    A("s_lshl_b32 s22, s22, 2")
    A("s_lshr_b32 s23, s21, 3")
    A("s_add_u32 s31, s22, s23")
    W = S_WAVE
    load_ptr(A, 4, "ws"); load_ptr(A, 8, "ws"); load_ptr(A, 12, "q"); load_ptr(A, 16, "ws")
    load_ptr(A, 52, "ws"); load_ptr(A, 20, "b2")
    A("v_and_b32 v2, 63, v0")
    A("v_lshlrev_b32 v3, 4, v2")
    A("v_add_u32 v4, 4096, v3")
    A(f"s_mul_i32 s24, s{W}, 12")
    A("s_mul_i32 s25, s30, 48")
    A("s_add_u32 s25, s25, s24")
    A("s_lshl_b32 s32, s25, 12")
    A("s_mul_i32 s25, s31, 48")
    A("s_add_u32 s25, s25, s24")
    A("s_mul_i32 s33, s25, 5120")
    A("s_waitcnt lgkmcnt(0)")
    make_srd(A, 4, 32*48*4096, add=WS_H)
    make_srd(A, 8, 8*48*5120, add=WS_W2)
    make_srd(A, 12, SZ["q"])
    make_srd(A, 16, 640*4096, add=WS_Z)
    make_srd(A, 52, 2048*8, add=WS_ST)
    make_srd(A, 20, SZ["b2"])
    ACC = 24; FR0 = 104
    A("v_and_b32 v5, 15, v2")
    A("v_lshrrev_b32 v8, 4, v2")
    A("s_lshl_b32 s24, s30, 6")
    A(f"s_lshl_b32 s25, s{W}, 4")
    A("s_add_u32 s24, s24, s25")
    A("v_add_u32 v5, s24, v5")
    A("v_lshlrev_b32 v9, 3, v5")
    A("s_movk_i32 s26, 1280")
    A("v_mul_lo_u32 v20, v5, s26")
    A("s_mul_i32 s27, s31, 160")
    A("v_lshlrev_b32 v21, 3, v8")
    A("v_add_u32 v21, s27, v21")
    A("v_add_u32 v20, v20, v21")
    for db in range(5):
        A(f"buffer_load_dwordx2 {v(10+2*db,2)}, v20, s[12:15], 0 offen offset:{32*db}")
    A(f"s_mul_i32 s24, s{W}, 48")
    A(f"s_add_u32 s24, s24, {F_W2}")
    A("v_lshlrev_b32 v22, 2, v2")
    A("v_add_u32 v23, s24, v22")
    A("s_lshl_b32 s24, s30, 3")
    A(f"s_add_u32 s24, s24, {F_ST - 48}")
    A("v_add_u32 v6, s24, v22")
    A("v_cmp_gt_u32 vcc, 12, v2")
    A("s_nop 1")
    A("v_cndmask_b32 v23, v6, v23, vcc")
    poll_flags(A, 23, 6, 14)
    A("buffer_load_dwordx2 v[6:7], v9, s[52:55], 0 offen sc1")
    def loadsW(st):
        b = FR0 + 36*(st % DEPTH)
        out = []
        for db in range(4):
            out.append(f"buffer_load_dwordx4 {v(b+16+4*db,4)}, v3, s[8:11], s33 offen offset:{1024*db} sc1")
        out.append(f"buffer_load_dwordx4 {v(b+32,4)}, v4, s[8:11], s33 offen sc1")
        out.append("s_add_u32 s33, s33, 5120")
        return out
    def loadsH(st):
        b = FR0 + 36*(st % DEPTH)
        out = []
        for tb in range(4):
            out.append(f"buffer_load_dwordx4 {v(b+4*tb,4)}, v3, s[4:7], s32 offen offset:{1024*tb} sc1")
        out.append("s_add_u32 s32, s32, 4096")
        return out
    for st in range(DEPTH):
        for x in loadsW(st): A(x)
    stamp(A, 27)
    A("s_mul_i32 s24, s30, 24")
    A(f"s_mul_i32 s25, s{W}, 6")
    A("s_add_u32 s24, s24, s25")
    A("s_lshl_b32 s24, s24, 2")
    A(f"s_add_u32 s24, s24, {F_H}")
    A("v_add_u32 v23, s24, v22")
    poll_flags(A, 23, 8, 6)
    stamp(A, 28)
    for st in range(DEPTH):
        for x in loadsH(st): A(x)
    NST = 12
    for st in range(NST):
        if st < DEPTH:
            younger = 4*(DEPTH - 1 - st) + 9*min(st, NST - DEPTH)
            younger = 4*(DEPTH-1-st) + 9*st if st + 0 <= NST - DEPTH else younger
        else:
            younger = 9*min(DEPTH - 1, NST - 1 - st)
        A(f"s_waitcnt vmcnt({younger})")
        b = FR0 + 36*(st % DEPTH)
        for db in range(5):
            for tb in range(4):
                acc = v(ACC + (db*4+tb)*4, 4)
                A(f"v_mfma_f32_16x16x32_bf16 {acc}, {v(b+16+4*db,4)}, {v(b+4*tb,4)}, {'0' if st == 0 else acc}")
        if st + DEPTH < NST:
            for x in loadsW(st + DEPTH): A(x)
            for x in loadsH(st + DEPTH): A(x)
    stamp(A, 29)
    for db in range(5):
        A(f"buffer_load_dwordx2 {v(104+2*db,2)}, v21, s[20:23], 0 offen offset:{32*db}")
    A("s_nop 7")
    for tb in range(4):
        lab = A.uid("g2skip")
        A(f"s_cmp_eq_u32 s{W}, {tb}")
        A(f"s_cbranch_scc1 {lab}")
        A(f"s_sub_u32 s24, s{W}, {tb+1}")
        A("s_and_b32 s24, s24, 3")
        A("s_mul_i32 s24, s24, 5120")
        A(f"s_add_u32 s24, s24, {RED + tb*15360}")
        A("v_add_u32 v5, s24, v3")
        for db in range(5):
            A(f"ds_write_b128 v5, {v(ACC+(db*4+tb)*4,4)} offset:{1024*db}")
        A.label(lab)
    for tb in range(4):
        lab = A.uid("g2own")
        A(f"s_cmp_lg_u32 s{W}, {tb}")
        A(f"s_cbranch_scc1 {lab}")
        for db in range(5):
            for r in range(4):
                A(f"v_mov_b32 v{116+4*db+r}, v{ACC+(db*4+tb)*4+r}")
        A.label(lab)
    A("s_mul_i32 s24, s31, 80")
    A(f"s_mul_i32 s25, s{W}, 20")
    A("s_add_u32 s24, s24, s25")
    A("s_lshl_b32 s25, s24, 2")
    A(f"s_add_u32 s25, s25, {F_Z}")
    A("v_add_u32 v23, s25, v22")
    poll_flags(A, 23, 8, 20)
    stamp(A, 30)
    A("v_lshrrev_b32 v8, 3, v2")
    A("v_and_b32 v9, 7, v2")
    A("v_lshlrev_b32 v23, 12, v8")
    A("v_lshl_add_u32 v23, v9, 4, v23")
    A("s_lshl_b32 s25, s24, 12")
    A("s_lshl_b32 s26, s30, 7")
    A("s_add_u32 s25, s25, s26")
    A("v_mov_b32 v24, 0x80000000")
    A("v_cmp_gt_u32 vcc, 32, v2")
    A("s_nop 1")
    A("v_add_u32 v25, 0x10000, v23")
    A("v_cndmask_b32 v25, v24, v25, vcc")
    A("buffer_load_dwordx4 v[28:31], v23, s[16:19], s25 offen sc1")
    A("v_add_u32 v26, 0x8000, v23")
    A("buffer_load_dwordx4 v[32:35], v26, s[16:19], s25 offen sc1")
    A("buffer_load_dwordx4 v[36:39], v25, s[16:19], s25 offen sc1")
    A(f"s_mul_i32 s24, s{W}, 2560")
    A(f"s_add_u32 s24, s24, {ZT}")
    A("v_add_u32 v5, s24, v3")
    A("s_waitcnt vmcnt(2)")
    A("ds_write_b128 v5, v[28:31]")
    A("s_waitcnt vmcnt(1)")
    A("ds_write_b128 v5, v[32:35] offset:1024")
    A("s_waitcnt vmcnt(0)")
    A("s_mov_b32 exec_hi, 0")
    A("ds_write_b128 v5, v[36:39] offset:2048")
    A("s_mov_b32 exec_hi, -1")
    A("s_waitcnt lgkmcnt(0)")
    A.label("g2_bar")
    A("s_barrier")
    A(f"s_mul_i32 s24, s{W}, 15360")
    A(f"s_add_u32 s24, s24, {RED}")
    A("v_add_u32 v5, s24, v3")
    for sp in range(3):
        for db in range(5):
            A(f"ds_read_b128 {v(24+20*sp+4*db,4)}, v5 offset:{sp*5120 + db*1024}")
    A("v_and_b32 v8, 15, v2")
    A("v_lshrrev_b32 v9, 4, v2")
    A("v_lshrrev_b32 v22, 2, v8")
    A("v_lshl_add_u32 v22, v9, 2, v22")
    A("v_lshlrev_b32 v22, 7, v22")
    A("v_and_b32 v8, 3, v8")
    A("v_lshl_add_u32 v22, v8, 3, v22")
    A(f"s_lshl_b32 s24, s{W}, 5")
    A(f"s_add_u32 s24, s24, {ZT}")
    A("v_add_u32 v22, s24, v22")
    for db in range(5):
        A(f"ds_read_b64_tr_b16 {v(136+2*db,2)}, v22 offset:{2048*db}")
    load_ptr(A, 52, "out")
    A("s_waitcnt lgkmcnt(0)")
    make_srd(A, 52, SZ["out"])
    for sp in range(3):
        for db in range(5):
            A(f"v_pk_add_f32 {v(116+4*db,2)}, {v(116+4*db,2)}, {v(24+20*sp+4*db,2)}")
            A(f"v_pk_add_f32 {v(116+4*db+2,2)}, {v(116+4*db+2,2)}, {v(24+20*sp+4*db+2,2)}")
    A("v_mul_f32 v8, v7, v7"); A("v_mov_b32 v9, v8")
    A("v_lshlrev_b32 v148, 16, v6"); A("v_mov_b32 v149, v148")
    A("v_mov_b32 v150, v7"); A("v_mov_b32 v151, v7")
    A("s_mov_b32 s24, 0xbfb8aa3b")
    def rnd(dst, tmp):
        A(f"v_cvt_pk_bf16_f32 v{tmp}, v{dst}, v{dst+1}")
        unpack(A, dst, tmp)
    for db in range(5):
        for hp in range(2):
            o = 116 + 4*db + 2*hp
            t = 24
            A(f"v_pk_mul_f32 {v(o,2)}, {v(o,2)}, v[8:9]")
            rnd(o, t)
            unpack(A, t+2, 104 + 2*db + hp)
            A(f"v_pk_add_f32 {v(o,2)}, {v(o,2)}, {v(t+2,2)}")
            rnd(o, t)
            A(f"v_mul_f32 v{t+2}, s24, v{o}")
            A(f"v_mul_f32 v{t+3}, s24, v{o+1}")
            A(f"v_exp_f32 v{t+2}, v{t+2}")
            A(f"v_exp_f32 v{t+3}, v{t+3}")
            A("s_nop 0")
            A(f"v_add_f32 v{t+2}, 1.0, v{t+2}")
            A(f"v_add_f32 v{t+3}, 1.0, v{t+3}")
            A(f"v_rcp_f32 v{t+2}, v{t+2}")
            A(f"v_rcp_f32 v{t+3}, v{t+3}")
            A("s_nop 0")
            A(f"v_pk_mul_f32 {v(o,2)}, {v(o,2)}, {v(t+2,2)}")
            rnd(o, t)
            unpack(A, t+4, 10 + 2*db + hp)
            A(f"v_pk_add_f32 {v(t+6,2)}, {v(t+4,2)}, v[148:149] neg_lo:[0,1] neg_hi:[0,1]")
            rnd(t+6, t)
            A(f"v_pk_mul_f32 {v(t+6,2)}, {v(t+6,2)}, v[150:151]")
            rnd(t+6, t)
            unpack(A, t+8, 136 + 2*db + hp)
            A(f"v_pk_mul_f32 {v(t+6,2)}, {v(t+6,2)}, {v(t+8,2)}")
            rnd(t+6, t)
            A(f"v_pk_mul_f32 {v(t+6,2)}, {v(t+6,2)}, {v(o,2)}")
            rnd(t+6, t)
            A(f"v_pk_add_f32 {v(t+6,2)}, {v(t+6,2)}, {v(t+4,2)}")
            A(f"v_cvt_pk_bf16_f32 v{152+2*db+hp}, v{t+6}, v{t+7}")
        A(f"buffer_store_dwordx2 {v(152+2*db,2)}, v20, s[52:55], 0 offen offset:{32*db}")

def gen_fused(A, name):
    kstart(A, name)
    END = f"{name}_end"
    A("s_cmp_ge_u32 s2, 256")
    A(f"s_cbranch_scc1 {END}")
    stamp(A, 0); stamp_rt(A, 1)
    A("v_lshrrev_b32 v1, 6, v0")
    A("s_nop 0")
    A(f"v_readfirstlane_b32 s{S_WAVE}, v1")
    A("s_nop 3")
    A("s_cmp_ge_u32 s2, 192")
    A("s_cbranch_scc1 L_helper")
    A("s_and_b32 s20, s2, 7")
    A("s_lshr_b32 s21, s2, 3")
    A("s_lshr_b32 s22, s20, 1")
    A("s_lshl_b32 s22, s22, 2")
    A("s_and_b32 s23, s21, 3")
    A("s_add_u32 s30, s22, s23")
    A("s_and_b32 s22, s20, 1")
    A("s_mul_i32 s22, s22, 6")
    A("s_lshr_b32 s23, s21, 2")
    A("s_add_u32 s31, s22, s23")
    A(f"s_cmp_ge_u32 s{S_WAVE}, 4")
    A("s_cbranch_scc1 L_g1prod")
    g1_consumer(A)
    A("s_branch L_gemm2")
    A.label("L_g1prod")
    g1_producer(A)
    A("s_branch L_convsel")
    A.label("L_helper")
    helper(A)
    A(f"s_cmp_lt_u32 s{S_WAVE}, 4")
    A("s_cbranch_scc1 L_gemm2")
    A.label("L_convsel")
    A("s_cmp_ge_u32 s2, 160")
    A("s_cbranch_scc1 L_convdone")
    conv_wave(A)
    A.label("L_convdone")
    stamp_rt(A, 31 - 0) if False else None
    stamp_rt(A, 26)
    stamp_flush(A, 31, f"s{S_WAVE}")
    A("s_barrier")
    A("s_endpgm")
    A.label("L_gemm2")
    gemm2_wave(A)
    stamp(A, 25) if False else None
    stamp_rt(A, 26)
    stamp_flush(A, 31, f"s{S_WAVE}")
    A.label(END)
    A("s_endpgm")
    return dict(vgpr=256, lds=LDS_TOTAL)

KNAME = "recurrent_scan__ssm_conv_h3__dense_activation_squared_relu__prompt_kernel"
HDR = open("recurrent_scan__ssm_conv_h3__dense_activation_squared_relu__prompt.s.ref").read().split("; Override launch")[0]
def build():
    A = Asm()
    info = gen_fused(A, KNAME)
    out = HDR + f"; @launch grid=(256,1,1) block=(512,1,1) lds={info['lds']}\n"
    out += '.amdgcn_target "amdgcn-amd-amdhsa--gfx950"\n.text\n' + A.text() + '.section .rodata,"a"\n' + kdesc(KNAME, info["vgpr"])
    return out

if __name__ == "__main__":
    if os.environ.get("STAMPS"): asmlib.STAMPS = True
    open(sys.argv[1] if len(sys.argv) > 1 else "f1.s", "w").write(build())
```

```python
import sys, os
import asmlib
from asmlib import *

WS_CS  = WS_END
WS_FL  = (WS_CS + 12*5*128*4 + 4095) // 4096 * 4096
F_ST = 0
F_CS = 256
F_KV = 512
F_W2 = 1536
F_H  = 2048
F_Z  = 5120
FL_SZ = 8192
WS_END2 = WS_FL + FL_SZ

STAGE = 32768
EXT = 4*STAGE
COPY = 4160; UOFF = 4*COPY; USZ = 4608; WREG = UOFF + USZ
RED = 4*WREG
ZT = RED + 61440
LDS_TOTAL = ZT + 10240
MAXSPIN = 40000

S_WAVE = 29
S_NONCE = 28
S_FLSRD = 40
S_DBG = 44

def setup_flag_srds(A):
    load_ptr(A, S_FLSRD, "ws"); load_ptr(A, S_DBG, "dbg")
    A("s_waitcnt lgkmcnt(0)")
    make_srd(A, S_FLSRD, FL_SZ, add=WS_FL)
    make_srd(A, S_DBG, 256)

def spin_fail(A):
    A("v_mov_b32 v250, 4"); A("v_mov_b32 v251, 0xdead")
    A(f"buffer_store_dword v251, v250, {s(S_DBG,4)}, 0 offen sc1")

def get_nonce(A, vt):
    L = A.uid("nonce"); D = A.uid("nonced")
    A("s_mov_b32 s26, 0")
    A(f"v_mov_b32 v{vt}, 0")
    A.label(L)
    A(f"buffer_load_dword v{vt+1}, v{vt}, {s(S_DBG,4)}, 0 offen sc1")
    A("s_waitcnt vmcnt(0)")
    A(f"v_readfirstlane_b32 s{S_NONCE}, v{vt+1}")
    A("s_nop 3")
    A(f"s_cmp_lg_u32 s{S_NONCE}, 0")
    A(f"s_cbranch_scc1 {D}")
    A("s_sleep 1")
    A("s_add_u32 s26, s26, 1")
    A(f"s_cmp_lt_u32 s26, {MAXSPIN}")
    A(f"s_cbranch_scc1 {L}")
    spin_fail(A)
    A.label(D)

def poll_flags(A, voff, vt, nlanes):
    L = A.uid("poll"); D = A.uid("polld")
    A("s_mov_b32 s26, 0")
    A(f"s_mov_b64 s[48:49], exec")
    if nlanes < 64:
        A(f"s_mov_b64 exec, {hex((1 << nlanes) - 1)}" if nlanes <= 32 else f"s_mov_b64 exec, {hex((1 << nlanes) - 1)}")
    A.label(L)
    A(f"buffer_load_dword v{vt}, v{voff}, {s(S_FLSRD,4)}, 0 offen sc1")
    A("s_waitcnt vmcnt(0)")
    A(f"v_cmp_ne_u32 vcc, s{S_NONCE}, v{vt}")
    A("s_nop 4")
    A(f"s_cbranch_vccz {D}")
    A("s_sleep 1")
    A("s_add_u32 s26, s26, 1")
    A(f"s_cmp_lt_u32 s26, {MAXSPIN}")
    A(f"s_cbranch_scc1 {L}")
    spin_fail(A)
    A.label(D)
    A(f"s_mov_b64 exec, s[48:49]")

def signal_flag(A, soff_sgpr, vt, imm=0):
    A(f"v_mov_b32 v{vt}, s{S_NONCE}")
    A(f"v_mov_b32 v{vt+1}, 0")
    A("s_mov_b64 s[48:49], exec")
    A("s_mov_b64 exec, 1")
    A(f"buffer_store_dword v{vt}, v{vt+1}, {s(S_FLSRD,4)}, s{soff_sgpr} offen offset:{imm} sc1")
    A("s_mov_b64 exec, s[48:49]")

DBGT = bool(os.environ.get("DBGT"))
def dbgt(A, idx, wg, wave=None):
    if not DBGT: return
    L = A.uid("dbgt")
    A(f"s_cmp_lg_u32 s2, {wg}")
    A(f"s_cbranch_scc1 {L}")
    if wave is not None:
        A(f"s_cmp_lg_u32 s{S_WAVE}, {wave}")
        A(f"s_cbranch_scc1 {L}")
    A("s_memtime s[58:59]")
    A("s_waitcnt lgkmcnt(0)")
    A("s_sub_u32 s58, s58, s60")
    A("v_mov_b32 v252, s58")
    A(f"v_mov_b32 v253, {4*idx}")
    A(f"buffer_store_dword v252, v253, {s(S_DBG,4)}, 0 offen")
    A.label(L)

def unpack(A, dst, src):
    A(f"v_lshlrev_b32 v{dst}, 16, v{src}")
    A(f"v_and_b32 v{dst+1}, 0xffff0000, v{src}")

def g1_producer(A):
    P = 27
    A(f"s_sub_u32 s{P}, s{S_WAVE}, 4")
    load_ptr(A, 4, "q"); load_ptr(A, 8, "w1"); load_ptr(A, 12, "b1"); load_ptr(A, 16, "ws"); load_ptr(A, 20, "ws")
    A("v_and_b32 v2, 63, v0")
    A("v_lshrrev_b32 v3, 3, v2")
    A("v_and_b32 v4, 7, v2")
    A(f"s_lshl_b32 s24, s{P}, 5")
    A("s_movk_i32 s25, 1280")
    for e in range(4):
        A(f"v_add_u32 v5, s24, v3")
        if e: A(f"v_add_u32 v5, {8*e}, v5")
        A(f"v_bfe_u32 v6, v5, 1, 3")
        A(f"v_xor_b32 v6, v6, v4")
        A(f"v_lshlrev_b32 v6, 4, v6")
        A(f"v_mul_lo_u32 v7, v5, s25")
        A(f"v_add_u32 v{10+e}, v7, v6")
    A("v_lshrrev_b32 v3, 4, v2")
    A("v_and_b32 v4, 15, v2")
    A("v_lshlrev_b32 v6, 2, v3")
    A("v_xor_b32 v6, v6, v4")
    A("v_lshlrev_b32 v6, 4, v6")
    A(f"s_lshl_b32 s24, s{P}, 4")
    A("s_movk_i32 s25, 3072")
    for e in range(4):
        A(f"v_add_u32 v5, s24, v3")
        if e: A(f"v_add_u32 v5, {4*e}, v5")
        A(f"v_mul_lo_u32 v7, v5, s25")
        A(f"v_add_u32 v{14+e}, v7, v6")
    A("s_mul_i32 s32, s30, 163840")
    A("s_lshl_b32 s33, s31, 8")
    A(f"s_lshl_b32 s34, s{P}, 12")
    A("s_waitcnt lgkmcnt(0)")
    make_srd(A, 4, SZ["q"]); make_srd(A, 8, SZ["w1"])
    def issue(c):
        st = (c & 3) * STAGE
        for e in range(4):
            A(f"s_add_u32 m0, s34, {st + e*1024}")
            A("s_nop 0")
            A(f"buffer_load_dwordx4 v{10+e}, s[4:7], s32 offen lds")
            A(f"s_add_u32 m0, s34, {st + 16384 + e*1024}")
            A("s_nop 0")
            A(f"buffer_load_dwordx4 v{14+e}, s[8:11], s33 offen lds")
        A("s_add_u32 s32, s32, 128")
        A(f"s_add_u32 s33, s33, {64*3072}")
    for c in range(3): issue(c)
    make_srd(A, 12, SZ["b1"])
    make_srd(A, 16, 2048*8, add=WS_ST)
    make_srd(A, 20, 12*5*128*4, add=WS_CS)
    setup_flag_srds(A)
    for c in range(10):
        n_out = 16 if c <= 7 else (8 if c == 8 else 0)
        A(f"s_waitcnt vmcnt({n_out})")
        stamp(A, 2 + 2*c)
        A("s_barrier")
        stamp(A, 3 + 2*c)
        if c == 0: dbgt(A, 2, 8, 4)
        if c == 9: dbgt(A, 3, 8, 4)
        if c + 3 < 10: issue(c + 3)
    get_nonce(A, 20)
    A("v_and_b32 v8, 31, v2")
    A(f"s_lshl_b32 s24, s30, 2")
    A(f"s_add_u32 s24, s24, s{P}")
    A("s_lshl_b32 s24, s24, 2")
    A(f"s_add_u32 s24, s24, {F_ST}")
    A("s_mul_i32 s25, s31, 20")
    A(f"s_add_u32 s25, s25, {F_CS - 4}")
    A("v_lshlrev_b32 v20, 2, v2")
    A("v_add_u32 v20, s25, v20")
    A("v_mov_b32 v21, s24")
    A("v_cmp_eq_u32 vcc, 0, v2")
    A("s_nop 1")
    A("v_cndmask_b32 v20, v20, v21, vcc")
    poll_flags(A, 20, 21, 6)
    A(f"s_lshl_b32 s24, s30, 7")
    A(f"s_lshl_b32 s25, s{P}, 5")
    A("s_add_u32 s24, s24, s25")
    A("v_add_u32 v9, s24, v8")
    A("v_lshlrev_b32 v9, 3, v9")
    A("buffer_load_dwordx2 v[30:31], v9, s[16:19], 0 offen sc1")
    A("s_mul_i32 s24, s31, 2560")
    A(f"s_lshl_b32 s25, s{P}, 7")
    A("s_add_u32 s24, s24, s25")
    A("v_lshlrev_b32 v9, 2, v8")
    for k in range(5):
        A(f"buffer_load_dword v{32+k}, v9, s[20:23], s24 offen offset:{512*k} sc1")
    A("s_lshl_b32 s24, s31, 7")
    A(f"s_lshl_b32 s25, s{P}, 5")
    A("s_add_u32 s24, s24, s25")
    A("v_add_u32 v9, s24, v8")
    A("v_lshlrev_b32 v9, 1, v9")
    A("buffer_load_ushort v45, v9, s[12:15], 0 offen")
    A("s_waitcnt vmcnt(0)")
    A("v_and_b32 v40, 0xffff, v30")
    A("v_xor_b32 v40, 0x8000, v40")
    A("v_lshl_or_b32 v40, v40, 16, v40")
    A("v_lshrrev_b32 v41, 16, v30")
    A("v_mov_b32 v42, 0"); A("v_mov_b32 v43, 0")
    A("v_add_f32 v32, v32, v33"); A("v_add_f32 v34, v34, v35"); A("v_add_f32 v32, v32, v36"); A("v_add_f32 v32, v32, v34")
    A("v_cvt_pk_bf16_f32 v44, v32, v32")
    A("v_and_b32 v46, 0xffff0000, v44")
    A("v_sub_f32 v46, v32, v46")
    A("v_cvt_pk_bf16_f32 v44, v32, v46")
    A("v_mov_b32 v46, 0"); A("v_mov_b32 v47, 0")
    A("v_cmp_gt_u32 vcc, 32, v2")
    A("s_nop 1")
    for r in (40, 41, 44, 45):
        A(f"v_cndmask_b32 v{r}, 0, v{r}, vcc")
    A("v_lshlrev_b32 v48, 4, v2")
    A(f"s_lshl_b32 s24, s{P}, 10")
    A(f"s_add_u32 s24, s24, {EXT}")
    A("v_add_u32 v48, s24, v48")
    A("ds_write_b128 v48, v[44:47]")
    A("ds_write_b128 v48, v[40:43] offset:4096")
    A("s_waitcnt lgkmcnt(0)")
    stamp(A, 22)
    A("s_barrier")
    stamp(A, 23)

def g1_consumer(A):
    load_ptr(A, 16, "ws")
    A(f"s_and_b32 s34, s{S_WAVE}, 1")
    A(f"s_lshr_b32 s35, s{S_WAVE}, 1")
    A("v_and_b32 v2, 63, v0")
    A("v_lshrrev_b32 v3, 4, v2")
    A("v_and_b32 v4, 15, v2")
    A("v_lshrrev_b32 v5, 2, v4")
    A("v_and_b32 v7, 1, v3")
    A("v_lshlrev_b32 v8, 1, v7")
    A("v_bfe_u32 v7, v4, 1, 1")
    A("v_add_u32 v8, v8, v7")
    A("v_lshlrev_b32 v8, 4, v8")
    A("v_and_b32 v7, 1, v4")
    A("v_lshl_add_u32 v8, v7, 3, v8")
    A("v_lshrrev_b32 v7, 1, v3")
    A("v_lshl_add_u32 v9, v7, 3, v5")
    A("v_lshl_add_u32 v8, v9, 8, v8")
    A("v_add_u32 v8, 16384, v8")
    A("s_lshl_b32 s24, s34, 1")
    for fi in range(2):
        A(f"s_add_u32 s25, s24, {fi}")
        A(f"v_xor_b32 v6, s25, v5")
        A(f"v_lshl_add_u32 v{10+fi}, v6, 6, v8")
        A(f"v_add_u32 v{12+fi}, 0x10000, v{10+fi}")
    A("v_and_b32 v3, 31, v2")
    A("s_lshl_b32 s24, s35, 6")
    A("v_add_u32 v3, s24, v3")
    A("v_lshrrev_b32 v4, 5, v2")
    A("v_bfe_u32 v5, v3, 1, 3")
    A("v_xor_b32 v5, v5, v4")
    A("v_lshlrev_b32 v5, 4, v5")
    A("v_lshl_add_u32 v14, v3, 7, v5")
    for s_ in range(1, 4):
        A(f"v_xor_b32 v{14+s_}, {32*s_}, v14")
    for s_ in range(4):
        A(f"v_add_u32 v{18+s_}, 0x10000, v{14+s_}")
    A("v_bfe_u32 v3, v2, 4, 1")
    A("v_lshlrev_b32 v3, 10, v3")
    A("v_and_b32 v4, 15, v2")
    A("v_lshl_add_u32 v3, v4, 4, v3")
    A("v_lshrrev_b32 v4, 5, v2")
    A("v_lshl_add_u32 v22, v4, 8, v3")
    A("v_lshlrev_b32 v23, 4, v2")
    A(f"v_add_u32 v23, {EXT}, v23")
    A("s_lshl_b32 s24, s34, 11")
    A("v_add_u32 v24, s24, v23")
    A("s_lshl_b32 s24, s35, 11")
    A("v_add_u32 v25, s24, v23")
    A("s_lshl_b32 s24, s30, 1")
    A("s_add_u32 s24, s24, s35")
    A("s_mul_i32 s33, s24, 24")
    A("s_mul_i32 s24, s24, 48")
    A("s_lshl_b32 s25, s31, 2")
    A("s_add_u32 s24, s24, s25")
    A("s_lshl_b32 s25, s34, 1")
    A("s_add_u32 s24, s24, s25")
    A("s_lshl_b32 s36, s24, 12")
    A("s_add_u32 s37, s36, 4096")
    A("s_lshl_b32 s25, s31, 1")
    A("s_add_u32 s33, s33, s25")
    A("s_add_u32 s33, s33, s34")
    A("s_lshl_b32 s33, s33, 2")
    A(f"s_add_u32 s33, s33, {F_H}")
    A("s_waitcnt lgkmcnt(0)")
    make_srd(A, 16, 32*48*4096, add=WS_H)
    setup_flag_srds(A)
    skip = A.uid("nn")
    A(f"s_or_b32 s24, s2, s{S_WAVE}")
    A("s_cmp_lg_u32 s24, 0")
    A(f"s_cbranch_scc1 {skip}")
    A("s_memrealtime s[24:25]")
    A("s_waitcnt lgkmcnt(0)")
    A("s_or_b32 s24, s24, 1")
    A("v_mov_b32 v26, s24"); A("v_mov_b32 v27, 0")
    A("s_mov_b64 exec, 1")
    A(f"buffer_store_dword v26, v27, {s(S_DBG,4)}, 0 offen sc1")
    A("s_mov_b64 exec, -1")
    A.label(skip)
    ACC = 64
    FR = [128, 144, 160]
    def reads(c, s_, fs):
        st = c & 3; hi = st >> 1; off = (st & 1) * STAGE
        out = []
        base = FR[fs]
        for fi in range(2):
            va = (12 if hi else 10) + fi
            for h in range(2):
                out.append(f"ds_read_b64_tr_b16 {v(base+4*fi+2*h,2)}, v{va} offset:{off + s_*4096 + h*1024}")
        vb = (18 if hi else 14) + s_
        for ti in range(2):
            out.append(f"ds_read_b128 {v(base+8+4*ti,4)}, v{vb} offset:{off + ti*4096}")
        return out
    def mfmas(fs, first):
        base = FR[fs]
        out = []
        for fi in range(2):
            for ti in range(2):
                acc = v(ACC+(fi*2+ti)*16, 16)
                out.append(f"v_mfma_f32_32x32x16_bf16 {acc}, {v(base+4*fi,4)}, {v(base+8+4*ti,4)}, {'0' if first else acc}")
        return out
    steps = [(c, s_) for c in range(10) for s_ in range(4)]
    NS = len(steps)
    for q in range(NS + 2):
        if q < NS:
            c, s_ = steps[q]
            if s_ == 0:
                A("s_waitcnt lgkmcnt(0)")
                stamp(A, 2 + 2*c)
                A("s_barrier")
                stamp(A, 3 + 2*c)
            R = reads(c, s_, q % 3)
        else:
            R = []
        if q >= 2:
            if q < NS and steps[q][1] == 0: pass
            elif q - 1 < NS: A("s_waitcnt lgkmcnt(6)")
            else: A("s_waitcnt lgkmcnt(0)")
            M = mfmas((q-2) % 3, q - 2 == 0)
        else:
            M = []
        k = 0
        for i, m in enumerate(M):
            A(m)
            for _ in range(2):
                if k < len(R): A(R[k]); k += 1
        while k < len(R):
            A(R[k]); k += 1
    get_nonce(A, 26)
    stamp(A, 22)
    A("s_barrier")
    stamp(A, 23)
    base = FR[1]
    for fi in range(2):
        A(f"ds_read_b128 {v(base+4*fi,4)}, v24 offset:{1024*fi}")
    for ti in range(2):
        A(f"ds_read_b128 {v(base+8+4*ti,4)}, v25 offset:{4096 + 1024*ti}")
    A("s_waitcnt lgkmcnt(0)")
    for m in mfmas(1, False): A(m)
    A("s_nop 15")
    for fi in range(2):
        for ti in range(2):
            a0 = ACC + (fi*2+ti)*16
            o = 176 + (fi*2+ti)*8
            for r in range(0, 16, 2):
                A(f"v_mul_f32 v{a0+r}, v{a0+r}, abs(v{a0+r})")
                A(f"v_mul_f32 v{a0+r+1}, v{a0+r+1}, abs(v{a0+r+1})")
                A(f"v_cvt_pk_bf16_f32 v{o+r//2}, v{a0+r}, v{a0+r+1}")
                A(f"v_pk_max_i16 v{o+r//2}, v{o+r//2}, 0")
            for cc in range(2):
                A(f"buffer_store_dwordx4 {v(o+4*cc,4)}, v22, s[16:19], s{36+fi} offen offset:{cc*512 + ti*2048} sc1")
    stamp(A, 24)
    A("s_waitcnt vmcnt(0)")
    signal_flag(A, 33, 26)
    stamp(A, 25)

def helper(A):
    J = 30
    A(f"s_sub_u32 s{J}, s2, 192")
    load_ptr(A, 4, "q"); load_ptr(A, 8, "w1"); load_ptr(A, 12, "ws"); load_ptr(A, 16, "ws")
    A("v_and_b32 v2, 63, v0")
    A("v_lshrrev_b32 v3, 4, v2")
    A("v_and_b32 v4, 15, v2")
    A(f"s_lshl_b32 s24, s{J}, 5")
    A(f"s_lshl_b32 s25, s{S_WAVE}, 2")
    A("s_add_u32 s24, s24, s25")
    A("v_add_u32 v5, s24, v3")
    A("s_movk_i32 s25, 1280")
    A("v_mul_lo_u32 v6, v5, s25")
    A("v_lshl_add_u32 v6, v4, 4, v6")
    A("v_lshlrev_b32 v7, 3, v5")
    A(f"s_mul_hi_u32 s32, s{J}, 0x33333334")
    A("s_mul_i32 s33, s32, 5")
    A(f"s_sub_u32 s33, s{J}, s33")
    A("s_lshl_b32 s24, s33, 7")
    A(f"s_lshl_b32 s25, s{S_WAVE}, 4")
    A("s_add_u32 s24, s24, s25")
    A("v_add_u32 v8, s24, v3")
    A("s_movk_i32 s25, 3072")
    A("v_mul_lo_u32 v8, v8, s25")
    A("v_lshl_add_u32 v8, v4, 4, v8")
    A("s_lshl_b32 s34, s32, 8")
    A("s_waitcnt lgkmcnt(0)")
    make_srd(A, 4, SZ["q"]); make_srd(A, 8, SZ["w1"])
    for e in range(5):
        A(f"buffer_load_dwordx4 {v(16+4*e,4)}, v6, s[4:7], 0 offen offset:{256*e}")
    for e in range(4):
        A(f"s_add_u32 s35, s34, {4*3072*e}")
        A(f"buffer_load_dwordx4 {v(36+4*e,4)}, v8, s[8:11], s35 offen")
    make_srd(A, 12, 2048*8, add=WS_ST)
    make_srd(A, 16, 12*5*128*4, add=WS_CS)
    setup_flag_srds(A)
    A("v_mov_b32 v52, 0"); A("v_mov_b32 v53, 0"); A("v_mov_b32 v54, 0"); A("v_mov_b32 v55, 0")
    A("v_lshlrev_b32 v56, 4, v2")
    z = A.uid("z")
    A(f"s_cmp_lg_u32 s{S_WAVE}, 0")
    A(f"s_cbranch_scc1 {z}")
    A("ds_write_b128 v56, v[52:55]")
    A.label(z)
    A("s_mov_b32 s37, 0x3f803f80")
    A("v_mov_b32 v57, 0"); A("v_mov_b32 v58, 0"); A("v_mov_b32 v59, 0"); A("v_mov_b32 v60, 0")
    A("s_waitcnt vmcnt(4)")
    stamp(A, 5)
    dbgt(A, 4, 200, 0)
    for r in range(16, 36):
        a_ = 57 + 2*(r & 1)
        A(f"v_dot2_f32_bf16 v{a_}, v{r}, s37, v{a_}")
        A(f"v_dot2_f32_bf16 v{a_+1}, v{r}, v{r}, v{a_+1}")
    A("s_nop 3")
    A("v_add_f32 v57, v57, v59"); A("v_add_f32 v58, v58, v60")
    for sh in (8, 4, 2, 1):
        A("s_nop 1")
        A(f"v_add_f32_dpp v57, v57, v57 row_ror:{sh} row_mask:0xf bank_mask:0xf")
        A(f"v_add_f32_dpp v58, v58, v58 row_ror:{sh} row_mask:0xf bank_mask:0xf")
    A("s_mov_b32 s38, 0x3acccccd")
    A("v_mul_f32 v57, s38, v57"); A("v_mul_f32 v58, s38, v58")
    A("v_fma_f32 v58, -v57, v57, v58")
    A("v_max_f32 v58, 0, v58")
    A("v_cvt_pk_bf16_f32 v59, v57, v58")
    A("v_and_b32 v60, 0xffff0000, v59")
    A("v_add_f32 v60, 0x3727c5ac, v60")
    A("v_cvt_pk_bf16_f32 v60, v60, v60")
    A("v_and_b32 v60, 0xffff0000, v60")
    A("v_sqrt_f32 v60, v60")
    A("s_nop 0")
    A("v_cvt_pk_bf16_f32 v60, v60, v60")
    A("v_and_b32 v60, 0xffff0000, v60")
    A("v_rcp_f32 v63, v60")
    A("v_and_b32 v62, 0xffff, v59")
    A("v_or_b32 v62, v62, v60")
    A("v_mov_b32 v61, 0x80000000")
    A("v_cmp_eq_u32 vcc, 0, v4")
    A("s_nop 1")
    A("v_cndmask_b32 v7, v61, v7, vcc")
    stamp(A, 6)
    A("s_waitcnt vmcnt(0)")
    A("buffer_store_dwordx2 v[62:63], v7, s[12:15], 0 offen sc1")
    for d in range(4):
        unpack(A, 64 + 2*d, 36 + d)
    for e in range(1, 4):
        for d in range(4):
            unpack(A, 72, 36 + 4*e + d)
            A(f"v_add_f32 v{64+2*d}, v{64+2*d}, v72")
            A(f"v_add_f32 v{65+2*d}, v{65+2*d}, v73")
    A("s_waitcnt lgkmcnt(0)")
    stamp(A, 7)
    A("s_barrier")
    A("v_lshlrev_b32 v74, 5, v4")
    for d in range(8):
        A(f"ds_add_f32 v74, v{64+d} offset:{4*d}")
    A("s_waitcnt vmcnt(0) lgkmcnt(0)")
    stamp(A, 8)
    A("s_barrier")
    stamp(A, 9)
    get_nonce(A, 75)
    stamp(A, 10)
    w0 = A.uid("w0")
    A(f"s_cmp_lg_u32 s{S_WAVE}, 0")
    A(f"s_cbranch_scc1 {w0}")
    A(f"s_lshl_b32 s24, s{J}, 2")
    signal_flag(A, 24, 75, imm=F_ST)
    A(f"s_cmp_ge_u32 s{J}, 60")
    A(f"s_cbranch_scc1 {w0}")
    A("ds_read_b128 v[76:79], v56")
    A(f"s_mul_i32 s24, s{J}, 512")
    A("v_mov_b32 v61, 0x80000000")
    A("v_cmp_gt_u32 vcc, 32, v2")
    A("s_nop 1")
    A("v_cndmask_b32 v80, v61, v56, vcc")
    A("s_waitcnt lgkmcnt(0)")
    A("buffer_store_dwordx4 v[76:79], v80, s[16:19], s24 offen sc1")
    A("s_waitcnt vmcnt(0)")
    A(f"s_lshl_b32 s24, s{J}, 2")
    signal_flag(A, 24, 75, imm=F_CS)
    A.label(w0)
    stamp(A, 2)
    dbgt(A, 5, 200, 0)
    load_ptr(A, 4, "k"); load_ptr(A, 8, "v"); load_ptr(A, 12, "sk"); load_ptr(A, 16, "ws")
    A(f"s_lshl_b32 s31, s{J}, 1")
    A("s_mov_b32 s39, 2")
    t2 = A.uid("t2")
    A(f"s_cmp_lt_u32 s{J}, 48")
    A(f"s_cbranch_scc1 {t2}")
    A(f"s_sub_u32 s31, s{J}, 48")
    A("s_lshl_b32 s31, s31, 2")
    A("s_add_u32 s31, s31, 96")
    A("s_mov_b32 s39, 4")
    A.label(t2)
    A("s_waitcnt lgkmcnt(0)")
    make_srd(A, 4, SZ["k"]); make_srd(A, 8, SZ["v"]); make_srd(A, 12, SZ["sk"])
    make_srd(A, 16, 640*4096, add=WS_KV)
    KL = A.uid("kvloop")
    A.label(KL)
    A("s_mul_hi_u32 s20, s31, 0x1999999A")
    A("s_mul_i32 s21, s20, 10")
    A("s_sub_u32 s21, s31, s21")
    A("s_lshl_b32 s22, s20, 7")
    A("v_lshrrev_b32 v1, 3, v0")
    A("v_and_b32 v2, 7, v0")
    A("v_lshlrev_b32 v3, 1, v1")
    A("v_add_u32 v3, s22, v3")
    A("s_lshl_b32 s23, s21, 7")
    A("v_lshlrev_b32 v4, 4, v2")
    A("v_add_u32 v4, s23, v4")
    A("s_movk_i32 s24, 1280")
    A("v_mov_b32 v9, 0x80000000")
    for i in range(5):
        A(f"v_add_u32 v5, {i-3}, v3")
        A(f"v_mul_lo_u32 v6, v5, s24")
        A(f"v_add_u32 v6, v6, v4")
        A(f"v_cmp_gt_i32 vcc, 0, v5")
        A("s_nop 1")
        A(f"v_cndmask_b32 v{10+i}, v6, v9, vcc")
    A("v_mov_b32 v15, v13")
    A("s_lshl_b32 s25, s21, 9")
    A("v_lshlrev_b32 v7, 6, v2")
    A("v_add_u32 v7, s25, v7")
    for i in range(4):
        A(f"buffer_load_dwordx4 {v(44+4*i,4)}, v7, s[12:15], 0 offen offset:{16*i}")
    for i in range(5):
        A(f"buffer_load_dwordx4 {v(16+4*i,4)}, v{10+i}, s[4:7], 0 offen")
    A(f"buffer_load_dwordx4 {v(36,4)}, v15, s[8:11], 0 offen")
    A(f"buffer_load_dwordx4 {v(40,4)}, v15, s[8:11], 0 offen offset:1280")
    T1 = 4096; T2 = T1 + 16384
    for tau in range(2):
        A(f"v_lshlrev_b32 v5, 1, v1")
        A(f"v_sub_u32 v5, {127 - tau}, v5")
        A(f"v_bfe_u32 v6, v5, 1, 1")
        A(f"v_bfe_u32 v8, v5, 3, 1")
        A(f"v_lshl_or_b32 v6, v8, 1, v6")
        A(f"v_lshlrev_b32 v6, 1, v6")
        A(f"v_xor_b32 v6, v6, v2")
        A(f"v_lshlrev_b32 v6, 4, v6")
        A(f"v_lshl_add_u32 v{60+tau}, v5, 7, v6")
    stamp(A, 11)
    A("s_waitcnt vmcnt(7)")
    S = lambda j, cp: 64 + (j*4+cp)*2
    for cp in range(4):
        for hh in range(2):
            d0 = 44 + 2*(2*cp+hh)
            A(f"v_lshlrev_b32 v{S(0,cp)+hh}, 16, v{d0}")
            A(f"v_and_b32 v{S(1,cp)+hh}, 0xffff0000, v{d0}")
            A(f"v_lshlrev_b32 v{S(2,cp)+hh}, 16, v{d0+1}")
            A(f"v_and_b32 v{S(3,cp)+hh}, 0xffff0000, v{d0+1}")
    A("s_waitcnt vmcnt(0)")
    stamp(A, 12)
    K = lambda i, cp: 96 + (i*4+cp)*2
    V = lambda t, cp: 136 + (t*4+cp)*2
    for i in range(5):
        for cp in range(4):
            unpack(A, K(i,cp), 16+4*i+cp)
    for t in range(2):
        for cp in range(4):
            unpack(A, V(t,cp), 36+4*t+cp)
    for tau in range(2):
        for cp in range(4):
            ac = 152 + 4*cp
            A(f"v_pk_mul_f32 {v(ac,2)}, {v(K(tau,cp),2)}, {v(S(3,cp),2)}")
        for cp in range(4):
            ac = 152 + 4*cp; pk = 168 + cp
            A(f"v_cvt_pk_bf16_f32 v{pk}, v{ac}, v{ac+1}")
        for cp in range(4):
            unpack(A, 152 + 4*cp, 168 + cp)
        for step, j in ((1, 2), (2, 1), (3, 0)):
            for cp in range(4):
                tp = 152 + 4*cp + 2
                A(f"v_pk_mul_f32 {v(tp,2)}, {v(K(tau+step,cp),2)}, {v(S(j,cp),2)}")
            for cp in range(4):
                tp = 152 + 4*cp + 2; pk = 168 + cp
                A(f"v_cvt_pk_bf16_f32 v{pk}, v{tp}, v{tp+1}")
            for cp in range(4):
                unpack(A, 152 + 4*cp + 2, 168 + cp)
            for cp in range(4):
                ac = 152 + 4*cp; tp = ac + 2
                A(f"v_pk_add_f32 {v(ac,2)}, {v(ac,2)}, {v(tp,2)}")
            for cp in range(4):
                ac = 152 + 4*cp; pk = 168 + cp
                A(f"v_cvt_pk_bf16_f32 v{pk}, v{ac}, v{ac+1}")
            for cp in range(4):
                unpack(A, 152 + 4*cp, 168 + cp)
        for cp in range(4):
            ac = 152 + 4*cp
            A(f"v_pk_mul_f32 {v(ac,2)}, {v(ac,2)}, {v(V(tau,cp),2)}")
        for cp in range(4):
            ac = 152 + 4*cp
            A(f"v_cvt_pk_bf16_f32 v{172+4*tau+cp}, v{ac}, v{ac+1}")
        A(f"ds_write_b128 v{60+tau}, {v(172+4*tau,4)} offset:{T1}")
    stamp(A, 13)
    A("v_lshrrev_b32 v1, 6, v0")
    A("v_and_b32 v2, 63, v0")
    A("v_lshrrev_b32 v3, 4, v2")
    A("v_and_b32 v4, 15, v2")
    A("v_and_b32 v16, 3, v1")
    A("v_lshrrev_b32 v17, 2, v1")
    A("v_lshrrev_b32 v5, 2, v4")
    A("v_lshl_add_u32 v5, v3, 3, v5")
    A("v_lshl_add_u32 v5, v17, 6, v5")
    A("v_bfe_u32 v6, v4, 3, 1")
    A("v_and_b32 v7, 1, v3")
    A("v_lshl_or_b32 v6, v7, 1, v6")
    A("v_lshlrev_b32 v6, 1, v6")
    A("v_bfe_u32 v7, v4, 1, 1")
    A("v_lshl_or_b32 v7, v16, 1, v7")
    A("v_xor_b32 v7, v7, v6")
    A("v_lshlrev_b32 v7, 4, v7")
    A("v_and_b32 v8, 1, v4")
    A("v_lshl_or_b32 v7, v8, 3, v7")
    A("v_lshl_add_u32 v9, v5, 7, v7")
    A("v_and_b32 v11, 7, v4")
    A("v_xor_b32 v12, v3, v11")
    A("v_xor_b32 v13, 4, v12")
    A("v_lshlrev_b32 v12, 4, v12")
    A("v_lshlrev_b32 v13, 4, v13")
    A("v_lshlrev_b32 v10, 11, v1")
    A("v_lshl_add_u32 v10, v4, 7, v10")
    A("v_add_u32 v12, v10, v12")
    A("v_add_u32 v13, v10, v13")
    A("s_waitcnt lgkmcnt(0)")
    A("s_barrier")
    A(f"ds_read_b64_tr_b16 v[16:17], v9 offset:{T1}")
    A(f"ds_read_b64_tr_b16 v[18:19], v9 offset:{T1+512}")
    A(f"ds_read_b64_tr_b16 v[20:21], v9 offset:{T1+4096}")
    A(f"ds_read_b64_tr_b16 v[22:23], v9 offset:{T1+4608}")
    A("v_lshrrev_b32 v5, 3, v2")
    A("v_and_b32 v6, 7, v2")
    A("v_lshlrev_b32 v7, 4, v6")
    A("v_lshl_add_u32 v7, v5, 7, v7")
    A("v_lshl_add_u32 v14, v1, 11, v7")
    A("v_xor_b32 v6, v6, v5")
    A("v_lshlrev_b32 v6, 4, v6")
    A("v_and_b32 v7, 3, v1")
    A("v_lshl_add_u32 v5, v7, 4, v5")
    A("v_lshl_add_u32 v15, v5, 12, v6")
    A("v_lshrrev_b32 v7, 2, v1")
    A("v_lshl_add_u32 v15, v7, 7, v15")
    A("s_lshl_b32 s26, s21, 18")
    A("s_sub_u32 s27, 1920, s22")
    A("s_lshl_b32 s27, s27, 1")
    A("s_add_u32 s36, s26, s27")
    A("s_waitcnt lgkmcnt(0)")
    A(f"ds_write_b128 v12, v[16:19] offset:{T2}")
    A(f"ds_write_b128 v13, v[20:23] offset:{T2}")
    A("s_waitcnt lgkmcnt(0)")
    A(f"ds_read_b128 v[24:27], v14 offset:{T2}")
    A(f"ds_read_b128 v[28:31], v14 offset:{T2+1024}")
    A("v_add_u32 v8, 0x8000, v15")
    A("s_waitcnt lgkmcnt(1)")
    A("buffer_store_dwordx4 v[24:27], v15, s[16:19], s36 offen sc1")
    A("s_waitcnt lgkmcnt(0)")
    A("buffer_store_dwordx4 v[28:31], v8, s[16:19], s36 offen sc1")
    stamp(A, 14)
    A("s_waitcnt vmcnt(0)")
    stamp(A, 15)
    A("s_barrier")
    w1 = A.uid("w1")
    A(f"s_cmp_lg_u32 s{S_WAVE}, 0")
    A(f"s_cbranch_scc1 {w1}")
    A("s_lshl_b32 s24, s21, 4")
    A("s_add_u32 s24, s24, s20")
    A("s_lshl_b32 s24, s24, 2")
    signal_flag(A, 24, 16, imm=F_KV)
    A.label(w1)
    A("s_add_u32 s31, s31, 1")
    A("s_sub_u32 s39, s39, 1")
    A("s_cmp_lg_u32 s39, 0")
    A(f"s_cbranch_scc1 {KL}")
    stamp(A, 3)
    dbgt(A, 6, 200, 0)
    done = A.uid("hdone")
    A(f"s_cmp_ge_u32 s{J}, 48")
    A(f"s_cbranch_scc1 {done}")
    load_ptr(A, 4, "w2"); load_ptr(A, 16, "ws")
    A(f"s_mul_i32 s21, s{J}, 40960")
    A("s_waitcnt lgkmcnt(0)")
    make_srd(A, 4, SZ["w2"]); make_srd(A, 16, 8*48*5*1024, add=WS_W2)
    PITCH = 1312
    for it in range(5):
        A(f"v_add_u32 v1, {512*it}, v0")
        A(f"v_mul_u32_u24 v2, 52429, v1")
        A(f"v_lshrrev_b32 v2, 22, v2")
        A(f"v_mul_u32_u24 v3, 80, v2")
        A(f"v_sub_u32 v3, v1, v3")
        A(f"v_lshlrev_b32 v3, 4, v3")
        A(f"v_lshlrev_b32 v4, 4, v1")
        A(f"buffer_load_dwordx4 {v(32+4*it,4)}, v4, s[4:7], s21 offen")
        A(f"v_mul_u32_u24 v2, {PITCH}, v2")
        A(f"v_add_u32 v{16+it}, v2, v3")
    for it in range(5):
        A(f"s_waitcnt vmcnt({4-it})")
        A(f"ds_write_b128 v{16+it}, {v(32+4*it,4)}")
    A("v_lshrrev_b32 v1, 6, v0")
    A("v_and_b32 v2, 63, v0")
    A("v_lshrrev_b32 v3, 4, v2")
    A("v_and_b32 v4, 15, v2")
    A("v_lshrrev_b32 v5, 1, v3")
    A("v_lshlrev_b32 v5, 4, v5")
    A("v_and_b32 v6, 1, v3")
    A("v_lshl_add_u32 v5, v6, 2, v5")
    A("v_lshrrev_b32 v6, 2, v4")
    A("v_add_u32 v5, v5, v6")
    A(f"v_mul_u32_u24 v5, {PITCH}, v5")
    A("v_and_b32 v6, 3, v4")
    A("v_lshl_add_u32 v5, v6, 3, v5")
    A("v_mul_u32_u24 v6, 160, v1")
    A("v_add_u32 v5, v5, v6")
    A("v_lshlrev_b32 v7, 4, v2")
    A("s_waitcnt lgkmcnt(0)")
    A("s_barrier")
    for e in range(5):
        A(f"ds_read_b64_tr_b16 {v(32+4*e,2)}, v5 offset:{32*e}")
        A(f"ds_read_b64_tr_b16 {v(34+4*e,2)}, v5 offset:{32*e + 8*PITCH}")
    A(f"s_mul_i32 s23, s{S_WAVE}, 245760")
    A(f"s_mul_i32 s24, s{J}, 5120")
    A("s_add_u32 s23, s23, s24")
    A("v_add_u32 v8, 4096, v7")
    A("s_waitcnt lgkmcnt(0)")
    for e in range(4):
        A(f"buffer_store_dwordx4 {v(32+4*e,4)}, v7, s[16:19], s23 offen offset:{1024*e} sc1")
    A(f"buffer_store_dwordx4 {v(48,4)}, v8, s[16:19], s23 offen sc1")
    A("s_waitcnt vmcnt(0)")
    A("s_barrier")
    w2 = A.uid("w2")
    A(f"s_cmp_lg_u32 s{S_WAVE}, 0")
    A(f"s_cbranch_scc1 {w2}")
    A(f"s_lshl_b32 s24, s{J}, 2")
    signal_flag(A, 24, 16, imm=F_W2)
    A.label(w2)
    A.label(done)
    A("s_waitcnt lgkmcnt(0)")
    A("s_barrier")
    stamp(A, 4)

def conv_wave(A):
    SW = 22; SD = 21
    load_ptr(A, 4, "ssm"); load_ptr(A, 8, "ws"); load_ptr(A, 12, "ws"); load_ptr(A, 16, "D")
    A("v_and_b32 v2, 63, v0")
    A(f"s_sub_u32 s20, s{S_WAVE}, 4")
    A("s_lshl_b32 s21, s2, 2")
    A("s_add_u32 s21, s21, s20")
    A(f"s_mul_i32 s22, s20, {WREG}")
    A("s_lshl_b32 s23, s21, 12")
    A("s_waitcnt lgkmcnt(0)")
    A("s_add_u32 s4, s4, s23"); A("s_addc_u32 s5, s5, 0")
    make_srd(A, 4, 4096)
    make_srd(A, 8, 640*4096, add=WS_KV)
    make_srd(A, 12, 640*4096, add=WS_Z)
    make_srd(A, 16, SZ["D"])
    A(f"s_lshl_b32 s24, s{SD}, 1")
    A("v_mov_b32 v3, s24")
    A("buffer_load_ushort v4, v3, s[16:19], 0 offen")
    A("v_lshlrev_b32 v5, 4, v2")
    A("v_mov_b32 v7, 0x80000000")
    A("v_add_u32 v6, -16, v5")
    A("v_cmp_eq_u32 vcc, 0, v2")
    A("s_nop 1")
    A("v_cndmask_b32 v8, v6, v7, vcc")
    for it in range(1, 4):
        A(f"v_add_u32 v{8+it}, {1024*it-16}, v5")
    A("v_mov_b32 v12, 4080")
    A("v_cndmask_b32 v12, v7, v12, vcc")
    for it in range(4):
        d = 16 + 6*it
        A(f"buffer_load_dwordx4 {v(d,4)}, v{8+it}, s[4:7], 0 offen")
        A(f"buffer_load_dwordx2 {v(d+4,2)}, v5, s[4:7], 0 offen offset:{1024*it}")
    A(f"buffer_load_dwordx4 {v(40,4)}, v12, s[4:7], 0 offen")
    A(f"v_mov_b32 v44, 0"); A(f"v_mov_b32 v45, 0")
    A("v_mov_b32 v46, 0"); A("v_mov_b32 v47, 0")
    A("v_lshlrev_b32 v13, 3, v2")
    A(f"v_add_u32 v13, s{SW}, v13")
    A(f"ds_write_b64 v13, v[46:47] offset:{UOFF+4096}")
    A(f"v_add_u32 v14, s{SW}, v5")
    A("v_mov_b32 v15, 4112")
    A("v_cndmask_b32 v15, 0, v15, vcc")
    A(f"v_add_u32 v15, s{SW}, v15")
    for it in range(5):
        d = 16 + 6*it
        A(f"s_waitcnt vmcnt({7 - 2*it if it < 4 else 0})")
        e = 48
        for k in range(5):
            A(f"v_alignbit_b32 v{e+k}, v{d+k+1}, v{d+k}, 16")
        if it == 4: A("s_mov_b64 exec, 3")
        adr = "v14" if it < 4 else "v15"
        off = 16 + 1024*it if it < 4 else 0
        A(f"ds_write_b128 {adr}, {v(e,4)} offset:{off}")
        A(f"v_mov_b32 v54, v{d+1}"); A(f"v_mov_b32 v55, v{d+2}"); A(f"v_mov_b32 v56, v{d+3}"); A(f"v_mov_b32 v57, v{d+4}")
        A(f"ds_write_b128 {adr}, {v(54,4)} offset:{off + COPY}")
        A(f"v_mov_b32 v58, v{e+1}"); A(f"v_mov_b32 v59, v{e+2}"); A(f"v_mov_b32 v60, v{e+3}"); A(f"v_mov_b32 v61, v{e+4}")
        A(f"ds_write_b128 {adr}, {v(58,4)} offset:{off + 2*COPY}")
        A(f"ds_write_b128 {adr}, {v(d+2,4)} offset:{off + 3*COPY}")
        if it == 4: A("s_mov_b64 exec, -1")
    stamp(A, 27)
    A(f"s_lshr_b32 s24, s{SD}, 6")
    A("s_lshl_b32 s24, s24, 6")
    A(f"s_add_u32 s24, s24, {F_KV}")
    A("v_lshlrev_b32 v16, 2, v2")
    A("v_add_u32 v16, s24, v16")
    poll_flags(A, 16, 17, 16)
    stamp(A, 28)
    for i in range(4):
        A(f"s_add_u32 s25, s23, {1024*i}")
        A(f"buffer_load_dwordx4 {v(16+4*i,4)}, v5, s[8:11], s25 offen sc1")
    A("v_and_b32 v6, 15, v2")
    A("v_lshrrev_b32 v7, 4, v2")
    A("v_and_b32 v8, 3, v6")
    A(f"v_mul_u32_u24 v8, {COPY}, v8")
    A("v_and_b32 v9, 12, v6")
    A("v_lshlrev_b32 v9, 1, v9")
    A("v_lshl_add_u32 v9, v7, 4, v9")
    A(f"v_add3_u32 v10, v8, v9, s{SW}")
    A("v_lshlrev_b32 v8, 5, v6")
    A("v_lshlrev_b32 v9, 4, v7")
    A("v_sub_u32 v9, v9, v8")
    A(f"v_add_u32 v9, {480 + UOFF}, v9")
    A(f"v_add_u32 v11, s{SW}, v9")
    A("v_lshlrev_b32 v9, 3, v7")
    A("v_add_u32 v12, v8, v9")
    A(f"v_sub_u32 v13, {504 + UOFF}, v12")
    A(f"v_add_u32 v13, s{SW}, v13")
    A("v_and_b32 v9, 1, v7")
    A("v_lshlrev_b32 v9, 9, v9")
    A("v_add_u32 v9, v9, v8")
    A("v_lshrrev_b32 v12, 1, v7")
    A("v_lshl_add_u32 v12, v12, 4, v9")
    for i in range(4):
        A(f"s_waitcnt vmcnt({3-i})")
        A(f"ds_write_b128 v14, {v(16+4*i,4)} offset:{UOFF + 1024*i}")
    A("s_waitcnt lgkmcnt(0)")
    SA = [64, 128]; SB = [96, 160]; ACC = 192
    def reads(r, st):
        out = []
        for i in range(8):
            out.append(f"ds_read_b64 {v(SA[st]+4*i,2)}, v10 offset:{64*r + 512*i}")
            out.append(f"ds_read_b128 {v(SB[st]+4*i,4)}, v11 offset:{512*(7-i) + 64*r}")
            out.append(f"ds_read_b64 {v(SA[st]+4*i+2,2)}, v10 offset:{64*r + 512*i + 8}")
        return out
    for x in reads(0, 0): A(x)
    for r in range(8):
        st = r & 1
        A("s_waitcnt lgkmcnt(0)")
        nxt = reads(r+1, 1-st) if r < 7 else []
        k = 0
        for i in range(8):
            for n in range(i, 8):
                c = "0" if (r == 0 and i == 0) else v(ACC+4*n,4)
                A(f"v_mfma_f32_16x16x32_bf16 {v(ACC+4*n,4)}, {v(SA[st]+4*i,4)}, {v(SB[st]+4*(n-i),4)}, {c}")
                if k < len(nxt):
                    A(nxt[k]); k += 1
    stamp(A, 29)
    for n in range(8):
        A(f"ds_read_b64 {v(64+2*n,2)}, v13 offset:{512*(7-n)}")
    A("v_lshlrev_b32 v4, 16, v4")
    A("v_mov_b32 v5, v4")
    A("s_nop 7")
    A("s_waitcnt lgkmcnt(0)")
    for n in range(8):
        k0 = 64 + 2*n; t = 96; a0 = ACC + 4*n
        A(f"v_and_b32 v{t}, 0xffff0000, v{k0+1}")
        A(f"v_lshlrev_b32 v{t+1}, 16, v{k0+1}")
        A(f"v_and_b32 v{t+2}, 0xffff0000, v{k0}")
        A(f"v_lshlrev_b32 v{t+3}, 16, v{k0}")
        A(f"v_pk_mul_f32 {v(t,2)}, {v(t,2)}, v[4:5]")
        A(f"v_pk_mul_f32 {v(t+2,2)}, {v(t+2,2)}, v[4:5]")
        A(f"v_cvt_pk_bf16_f32 v{t+4}, v{t}, v{t+1}")
        A(f"v_cvt_pk_bf16_f32 v{t+5}, v{t+2}, v{t+3}")
        A(f"v_cvt_pk_bf16_f32 v{t+6}, v{a0}, v{a0+1}")
        A(f"v_cvt_pk_bf16_f32 v{t+7}, v{a0+2}, v{a0+3}")
        unpack(A, t, t+4); unpack(A, t+2, t+5); unpack(A, t+8, t+6); unpack(A, t+10, t+7)
        A(f"v_pk_add_f32 {v(t,2)}, {v(t,2)}, {v(t+8,2)}")
        A(f"v_pk_add_f32 {v(t+2,2)}, {v(t+2,2)}, {v(t+10,2)}")
        o = 112 + 4*(n//2) + 2*(n & 1)
        A(f"v_cvt_pk_bf16_f32 v{o}, v{t}, v{t+1}")
        A(f"v_cvt_pk_bf16_f32 v{o+1}, v{t+2}, v{t+3}")
        if n & 1:
            b = 112 + 4*(n//2)
            A("s_nop 1")
            A(f"v_permlane16_swap_b32 v{b}, v{b+2}")
            A(f"v_permlane16_swap_b32 v{b+1}, v{b+3}")
            A(f"buffer_store_dwordx4 {v(b,4)}, v12, s[12:15], s23 offen offset:{512*(n-1)} sc1")
    A("s_waitcnt vmcnt(0)")
    A(f"s_lshl_b32 s24, s{SD}, 2")
    signal_flag(A, 24, 16, imm=0) if False else None
    A(f"s_add_u32 s24, s24, {F_Z}")
    signal_flag(A, 24, 16)
    stamp(A, 30)

def gemm2_wave(A, DEPTH=4):
    A("s_and_b32 s20, s2, 7")
    A("s_lshr_b32 s21, s2, 3")
    A("s_lshr_b32 s22, s20, 1")
    A("s_lshl_b32 s22, s22, 3")
    A("s_and_b32 s23, s21, 7")
    A("s_add_u32 s30, s22, s23")
    A("s_and_b32 s22, s20, 1")
    A("s_lshl_b32 s22, s22, 2")
    A("s_lshr_b32 s23, s21, 3")
    A("s_add_u32 s31, s22, s23")
    W = S_WAVE
    load_ptr(A, 4, "ws"); load_ptr(A, 8, "ws"); load_ptr(A, 12, "q"); load_ptr(A, 16, "ws")
    load_ptr(A, 52, "ws"); load_ptr(A, 20, "b2")
    A("v_and_b32 v2, 63, v0")
    A("v_lshlrev_b32 v3, 4, v2")
    A("v_add_u32 v4, 4096, v3")
    A(f"s_mul_i32 s24, s{W}, 12")
    A("s_mul_i32 s25, s30, 48")
    A("s_add_u32 s25, s25, s24")
    A("s_lshl_b32 s32, s25, 12")
    A("s_mul_i32 s25, s31, 48")
    A("s_add_u32 s25, s25, s24")
    A("s_mul_i32 s33, s25, 5120")
    A("s_waitcnt lgkmcnt(0)")
    make_srd(A, 4, 32*48*4096, add=WS_H)
    make_srd(A, 8, 8*48*5120, add=WS_W2)
    make_srd(A, 12, SZ["q"])
    make_srd(A, 16, 640*4096, add=WS_Z)
    make_srd(A, 52, 2048*8, add=WS_ST)
    make_srd(A, 20, SZ["b2"])
    ACC = 24; FR0 = 104
    A("v_and_b32 v5, 15, v2")
    A("v_lshrrev_b32 v8, 4, v2")
    A("s_lshl_b32 s24, s30, 6")
    A(f"s_lshl_b32 s25, s{W}, 4")
    A("s_add_u32 s24, s24, s25")
    A("v_add_u32 v5, s24, v5")
    A("v_lshlrev_b32 v9, 3, v5")
    A("s_movk_i32 s26, 1280")
    A("v_mul_lo_u32 v20, v5, s26")
    A("s_mul_i32 s27, s31, 160")
    A("v_lshlrev_b32 v21, 3, v8")
    A("v_add_u32 v21, s27, v21")
    A("v_add_u32 v20, v20, v21")
    for db in range(5):
        A(f"buffer_load_dwordx2 {v(10+2*db,2)}, v20, s[12:15], 0 offen offset:{32*db}")
    A(f"s_mul_i32 s24, s{W}, 48")
    A(f"s_add_u32 s24, s24, {F_W2}")
    A("v_lshlrev_b32 v22, 2, v2")
    A("v_add_u32 v23, s24, v22")
    A("s_lshl_b32 s24, s30, 3")
    A(f"s_add_u32 s24, s24, {F_ST - 48}")
    A("v_add_u32 v6, s24, v22")
    A("v_cmp_gt_u32 vcc, 12, v2")
    A("s_nop 1")
    A("v_cndmask_b32 v23, v6, v23, vcc")
    poll_flags(A, 23, 6, 14)
    A("buffer_load_dwordx2 v[6:7], v9, s[52:55], 0 offen sc1")
    def loadsW(st):
        b = FR0 + 36*(st % DEPTH)
        out = []
        for db in range(4):
            out.append(f"buffer_load_dwordx4 {v(b+16+4*db,4)}, v3, s[8:11], s33 offen offset:{1024*db} sc1")
        out.append(f"buffer_load_dwordx4 {v(b+32,4)}, v4, s[8:11], s33 offen sc1")
        out.append("s_add_u32 s33, s33, 5120")
        return out
    def loadsH(st):
        b = FR0 + 36*(st % DEPTH)
        out = []
        for tb in range(4):
            out.append(f"buffer_load_dwordx4 {v(b+4*tb,4)}, v3, s[4:7], s32 offen offset:{1024*tb} sc1")
        out.append("s_add_u32 s32, s32, 4096")
        return out
    for st in range(DEPTH):
        for x in loadsW(st): A(x)
    stamp(A, 27)
    A("s_mul_i32 s24, s30, 24")
    A(f"s_mul_i32 s25, s{W}, 6")
    A("s_add_u32 s24, s24, s25")
    A("s_lshl_b32 s24, s24, 2")
    A(f"s_add_u32 s24, s24, {F_H}")
    A("v_add_u32 v23, s24, v22")
    poll_flags(A, 23, 8, 6)
    stamp(A, 28)
    dbgt(A, 7, 8, 0)
    for st in range(DEPTH):
        for x in loadsH(st): A(x)
    NST = 12
    for st in range(NST):
        if st < DEPTH:
            younger = 4*(DEPTH - 1 - st) + 9*min(st, NST - DEPTH)
            younger = 4*(DEPTH-1-st) + 9*st if st + 0 <= NST - DEPTH else younger
        else:
            younger = 9*min(DEPTH - 1, NST - 1 - st)
        A(f"s_waitcnt vmcnt({younger})")
        b = FR0 + 36*(st % DEPTH)
        for db in range(5):
            for tb in range(4):
                acc = v(ACC + (db*4+tb)*4, 4)
                A(f"v_mfma_f32_16x16x32_bf16 {acc}, {v(b+16+4*db,4)}, {v(b+4*tb,4)}, {'0' if st == 0 else acc}")
        if st + DEPTH < NST:
            for x in loadsW(st + DEPTH): A(x)
            for x in loadsH(st + DEPTH): A(x)
    stamp(A, 29)
    dbgt(A, 8, 8, 0)
    for db in range(5):
        A(f"buffer_load_dwordx2 {v(104+2*db,2)}, v21, s[20:23], 0 offen offset:{32*db}")
    A("s_nop 7")
    for tb in range(4):
        lab = A.uid("g2skip")
        A(f"s_cmp_eq_u32 s{W}, {tb}")
        A(f"s_cbranch_scc1 {lab}")
        A(f"s_sub_u32 s24, s{W}, {tb+1}")
        A("s_and_b32 s24, s24, 3")
        A("s_mul_i32 s24, s24, 5120")
        A(f"s_add_u32 s24, s24, {RED + tb*15360}")
        A("v_add_u32 v5, s24, v3")
        for db in range(5):
            A(f"ds_write_b128 v5, {v(ACC+(db*4+tb)*4,4)} offset:{1024*db}")
        A.label(lab)
    for tb in range(4):
        lab = A.uid("g2own")
        A(f"s_cmp_lg_u32 s{W}, {tb}")
        A(f"s_cbranch_scc1 {lab}")
        for db in range(5):
            for r in range(4):
                A(f"v_mov_b32 v{116+4*db+r}, v{ACC+(db*4+tb)*4+r}")
        A.label(lab)
    A("s_mul_i32 s24, s31, 80")
    A(f"s_mul_i32 s25, s{W}, 20")
    A("s_add_u32 s24, s24, s25")
    A("s_lshl_b32 s25, s24, 2")
    A(f"s_add_u32 s25, s25, {F_Z}")
    A("v_add_u32 v23, s25, v22")
    poll_flags(A, 23, 8, 20)
    stamp(A, 30)
    A("v_lshrrev_b32 v8, 3, v2")
    A("v_and_b32 v9, 7, v2")
    A("v_lshlrev_b32 v23, 12, v8")
    A("v_lshl_add_u32 v23, v9, 4, v23")
    A("s_lshl_b32 s25, s24, 12")
    A("s_lshl_b32 s26, s30, 7")
    A("s_add_u32 s25, s25, s26")
    A("v_mov_b32 v24, 0x80000000")
    A("v_cmp_gt_u32 vcc, 32, v2")
    A("s_nop 1")
    A("v_add_u32 v25, 0x10000, v23")
    A("v_cndmask_b32 v25, v24, v25, vcc")
    A("buffer_load_dwordx4 v[28:31], v23, s[16:19], s25 offen sc1")
    A("v_add_u32 v26, 0x8000, v23")
    A("buffer_load_dwordx4 v[32:35], v26, s[16:19], s25 offen sc1")
    A("buffer_load_dwordx4 v[36:39], v25, s[16:19], s25 offen sc1")
    A(f"s_mul_i32 s24, s{W}, 2560")
    A(f"s_add_u32 s24, s24, {ZT}")
    A("v_add_u32 v5, s24, v3")
    A("s_waitcnt vmcnt(2)")
    A("ds_write_b128 v5, v[28:31]")
    A("s_waitcnt vmcnt(1)")
    A("ds_write_b128 v5, v[32:35] offset:1024")
    A("s_waitcnt vmcnt(0)")
    A("s_mov_b32 exec_hi, 0")
    A("ds_write_b128 v5, v[36:39] offset:2048")
    A("s_mov_b32 exec_hi, -1")
    A("s_waitcnt lgkmcnt(0)")
    A.label("g2_bar")
    A("s_barrier")
    A(f"s_mul_i32 s24, s{W}, 15360")
    A(f"s_add_u32 s24, s24, {RED}")
    A("v_add_u32 v5, s24, v3")
    for sp in range(3):
        for db in range(5):
            A(f"ds_read_b128 {v(24+20*sp+4*db,4)}, v5 offset:{sp*5120 + db*1024}")
    A("v_and_b32 v8, 15, v2")
    A("v_lshrrev_b32 v9, 4, v2")
    A("v_lshrrev_b32 v22, 2, v8")
    A("v_lshl_add_u32 v22, v9, 2, v22")
    A("v_lshlrev_b32 v22, 7, v22")
    A("v_and_b32 v8, 3, v8")
    A("v_lshl_add_u32 v22, v8, 3, v22")
    A(f"s_lshl_b32 s24, s{W}, 5")
    A(f"s_add_u32 s24, s24, {ZT}")
    A("v_add_u32 v22, s24, v22")
    for db in range(5):
        A(f"ds_read_b64_tr_b16 {v(136+2*db,2)}, v22 offset:{2048*db}")
    load_ptr(A, 52, "out")
    A("s_waitcnt lgkmcnt(0)")
    make_srd(A, 52, SZ["out"])
    for sp in range(3):
        for db in range(5):
            A(f"v_pk_add_f32 {v(116+4*db,2)}, {v(116+4*db,2)}, {v(24+20*sp+4*db,2)}")
            A(f"v_pk_add_f32 {v(116+4*db+2,2)}, {v(116+4*db+2,2)}, {v(24+20*sp+4*db+2,2)}")
    A("v_mul_f32 v8, v7, v7"); A("v_mov_b32 v9, v8")
    A("v_lshlrev_b32 v148, 16, v6"); A("v_mov_b32 v149, v148")
    A("v_mov_b32 v150, v7"); A("v_mov_b32 v151, v7")
    A("s_mov_b32 s24, 0xbfb8aa3b")
    def rnd(dst, tmp):
        A(f"v_cvt_pk_bf16_f32 v{tmp}, v{dst}, v{dst+1}")
        unpack(A, dst, tmp)
    for db in range(5):
        for hp in range(2):
            o = 116 + 4*db + 2*hp
            t = 24
            A(f"v_pk_mul_f32 {v(o,2)}, {v(o,2)}, v[8:9]")
            rnd(o, t)
            unpack(A, t+2, 104 + 2*db + hp)
            A(f"v_pk_add_f32 {v(o,2)}, {v(o,2)}, {v(t+2,2)}")
            rnd(o, t)
            A(f"v_mul_f32 v{t+2}, s24, v{o}")
            A(f"v_mul_f32 v{t+3}, s24, v{o+1}")
            A(f"v_exp_f32 v{t+2}, v{t+2}")
            A(f"v_exp_f32 v{t+3}, v{t+3}")
            A("s_nop 0")
            A(f"v_add_f32 v{t+2}, 1.0, v{t+2}")
            A(f"v_add_f32 v{t+3}, 1.0, v{t+3}")
            A(f"v_rcp_f32 v{t+2}, v{t+2}")
            A(f"v_rcp_f32 v{t+3}, v{t+3}")
            A("s_nop 0")
            A(f"v_pk_mul_f32 {v(o,2)}, {v(o,2)}, {v(t+2,2)}")
            rnd(o, t)
            unpack(A, t+4, 10 + 2*db + hp)
            A(f"v_pk_add_f32 {v(t+6,2)}, {v(t+4,2)}, v[148:149] neg_lo:[0,1] neg_hi:[0,1]")
            rnd(t+6, t)
            A(f"v_pk_mul_f32 {v(t+6,2)}, {v(t+6,2)}, v[150:151]")
            rnd(t+6, t)
            unpack(A, t+8, 136 + 2*db + hp)
            A(f"v_pk_mul_f32 {v(t+6,2)}, {v(t+6,2)}, {v(t+8,2)}")
            rnd(t+6, t)
            A(f"v_pk_mul_f32 {v(t+6,2)}, {v(t+6,2)}, {v(o,2)}")
            rnd(t+6, t)
            A(f"v_pk_add_f32 {v(t+6,2)}, {v(t+6,2)}, {v(t+4,2)}")
            A(f"v_cvt_pk_bf16_f32 v{152+2*db+hp}, v{t+6}, v{t+7}")
        A(f"buffer_store_dwordx2 {v(152+2*db,2)}, v20, s[52:55], 0 offen offset:{32*db}")

def gen_fused(A, name):
    kstart(A, name)
    END = f"{name}_end"
    A("s_cmp_ge_u32 s2, 256")
    A(f"s_cbranch_scc1 {END}")
    stamp(A, 0); stamp_rt(A, 1)
    if DBGT:
        A("s_memtime s[60:61]")
    A("v_lshrrev_b32 v1, 6, v0")
    A("s_nop 0")
    A(f"v_readfirstlane_b32 s{S_WAVE}, v1")
    A("s_nop 3")
    A("s_cmp_ge_u32 s2, 192")
    A("s_cbranch_scc1 L_helper")
    A("s_and_b32 s20, s2, 7")
    A("s_lshr_b32 s21, s2, 3")
    A("s_lshr_b32 s22, s20, 1")
    A("s_lshl_b32 s22, s22, 2")
    A("s_and_b32 s23, s21, 3")
    A("s_add_u32 s30, s22, s23")
    A("s_and_b32 s22, s20, 1")
    A("s_mul_i32 s22, s22, 6")
    A("s_lshr_b32 s23, s21, 2")
    A("s_add_u32 s31, s22, s23")
    A(f"s_cmp_ge_u32 s{S_WAVE}, 4")
    A("s_cbranch_scc1 L_g1prod")
    g1_consumer(A)
    A("s_branch L_gemm2")
    A.label("L_g1prod")
    g1_producer(A)
    A("s_branch L_convsel")
    A.label("L_helper")
    helper(A)
    A(f"s_cmp_lt_u32 s{S_WAVE}, 4")
    A("s_cbranch_scc1 L_gemm2")
    A.label("L_convsel")
    A("s_cmp_ge_u32 s2, 160")
    A("s_cbranch_scc1 L_convdone")
    conv_wave(A)
    A.label("L_convdone")
    stamp_rt(A, 31 - 0) if False else None
    stamp_rt(A, 26)
    stamp_flush(A, 31, f"s{S_WAVE}")
    A("s_barrier")
    A("s_endpgm")
    A.label("L_gemm2")
    gemm2_wave(A)
    dbgt(A, 9, 8, 0)
    stamp(A, 25) if False else None
    stamp_rt(A, 26)
    stamp_flush(A, 31, f"s{S_WAVE}")
    A.label(END)
    A("s_endpgm")
    return dict(vgpr=256, lds=LDS_TOTAL)

KNAME = "recurrent_scan__ssm_conv_h3__dense_activation_squared_relu__prompt_kernel"
HDR = open("recurrent_scan__ssm_conv_h3__dense_activation_squared_relu__prompt.s.ref").read().split("; Override launch")[0]
def build():
    A = Asm()
    info = gen_fused(A, KNAME)
    out = HDR + f"; @launch grid=(256,1,1) block=(512,1,1) lds={info['lds']}\n"
    out += '.amdgcn_target "amdgcn-amd-amdhsa--gfx950"\n.text\n' + A.text() + '.section .rodata,"a"\n' + kdesc(KNAME, info["vgpr"])
    return out

if __name__ == "__main__":
    if os.environ.get("STAMPS"): asmlib.STAMPS = True
    open(sys.argv[1] if len(sys.argv) > 1 else "f1.s", "w").write(build())
```

```python
import sys, os
import asmlib
from asmlib import *

WS_CS  = WS_END
WS_FL  = (WS_CS + 12*5*128*4 + 4095) // 4096 * 4096
F_ST = 0
F_CS = 256
F_KV = 512
F_W2 = 1536
F_H  = 2048
F_Z  = 5120
FL_SZ = 8192
WS_END2 = WS_FL + FL_SZ

STAGE = 32768
EXT = 4*STAGE
COPY = 4160; UOFF = 4*COPY; USZ = 4608; WREG = UOFF + USZ
RED = 4*WREG
ZT = RED + 61440
LDS_TOTAL = ZT + 10240
MAXSPIN = 40000

S_WAVE = 29
S_NONCE = 28
S_FLSRD = 40
S_DBG = 44

def setup_flag_srds(A):
    load_ptr(A, S_FLSRD, "ws"); load_ptr(A, S_DBG, "dbg")
    A("s_waitcnt lgkmcnt(0)")
    make_srd(A, S_FLSRD, FL_SZ, add=WS_FL)
    make_srd(A, S_DBG, 256)

def spin_fail(A):
    A("v_mov_b32 v250, 4"); A("v_mov_b32 v251, 0xdead")
    A(f"buffer_store_dword v251, v250, {s(S_DBG,4)}, 0 offen sc1")

def get_nonce(A, vt):
    L = A.uid("nonce"); D = A.uid("nonced")
    A("s_mov_b32 s26, 0")
    A(f"v_mov_b32 v{vt}, 0")
    A.label(L)
    A(f"buffer_load_dword v{vt+1}, v{vt}, {s(S_DBG,4)}, 0 offen sc1")
    A("s_waitcnt vmcnt(0)")
    A(f"v_readfirstlane_b32 s{S_NONCE}, v{vt+1}")
    A("s_nop 3")
    A(f"s_cmp_lg_u32 s{S_NONCE}, 0")
    A(f"s_cbranch_scc1 {D}")
    A("s_sleep 1")
    A("s_add_u32 s26, s26, 1")
    A(f"s_cmp_lt_u32 s26, {MAXSPIN}")
    A(f"s_cbranch_scc1 {L}")
    spin_fail(A)
    A.label(D)

def poll_flags(A, voff, vt, nlanes):
    L = A.uid("poll"); D = A.uid("polld")
    A("s_mov_b32 s26, 0")
    A(f"s_mov_b64 s[48:49], exec")
    if nlanes < 64:
        A(f"s_mov_b64 exec, {hex((1 << nlanes) - 1)}" if nlanes <= 32 else f"s_mov_b64 exec, {hex((1 << nlanes) - 1)}")
    A.label(L)
    A(f"buffer_load_dword v{vt}, v{voff}, {s(S_FLSRD,4)}, 0 offen sc1")
    A("s_waitcnt vmcnt(0)")
    A(f"v_cmp_ne_u32 vcc, s{S_NONCE}, v{vt}")
    A("s_nop 4")
    A(f"s_cbranch_vccz {D}")
    A("s_sleep 1")
    A("s_add_u32 s26, s26, 1")
    A(f"s_cmp_lt_u32 s26, {MAXSPIN}")
    A(f"s_cbranch_scc1 {L}")
    spin_fail(A)
    A.label(D)
    A(f"s_mov_b64 exec, s[48:49]")

def signal_flag(A, soff_sgpr, vt, imm=0):
    A(f"v_mov_b32 v{vt}, s{S_NONCE}")
    A(f"v_mov_b32 v{vt+1}, 0")
    A("s_mov_b64 s[48:49], exec")
    A("s_mov_b64 exec, 1")
    A(f"buffer_store_dword v{vt}, v{vt+1}, {s(S_FLSRD,4)}, s{soff_sgpr} offen offset:{imm} sc1")
    A("s_mov_b64 exec, s[48:49]")

DBGT = bool(os.environ.get("DBGT"))
def dbgt(A, idx, wg, wave=None):
    if not DBGT: return
    L = A.uid("dbgt")
    A(f"s_cmp_lg_u32 s2, {wg}")
    A(f"s_cbranch_scc1 {L}")
    if wave is not None:
        A(f"s_cmp_lg_u32 s{S_WAVE}, {wave}")
        A(f"s_cbranch_scc1 {L}")
    A("s_memtime s[58:59]")
    A("s_waitcnt lgkmcnt(0)")
    A("s_sub_u32 s58, s58, s60")
    A("v_mov_b32 v252, s58")
    A(f"v_mov_b32 v253, {4*idx}")
    A(f"buffer_store_dword v252, v253, {s(S_DBG,4)}, 0 offen")
    A.label(L)

def unpack(A, dst, src):
    A(f"v_lshlrev_b32 v{dst}, 16, v{src}")
    A(f"v_and_b32 v{dst+1}, 0xffff0000, v{src}")

def g1_producer(A):
    P = 27
    A(f"s_sub_u32 s{P}, s{S_WAVE}, 4")
    load_ptr(A, 4, "q"); load_ptr(A, 8, "w1"); load_ptr(A, 12, "b1"); load_ptr(A, 16, "ws"); load_ptr(A, 20, "ws")
    A("v_and_b32 v2, 63, v0")
    A("v_lshrrev_b32 v3, 3, v2")
    A("v_and_b32 v4, 7, v2")
    A(f"s_lshl_b32 s24, s{P}, 5")
    A("s_movk_i32 s25, 1280")
    for e in range(4):
        A(f"v_add_u32 v5, s24, v3")
        if e: A(f"v_add_u32 v5, {8*e}, v5")
        A(f"v_bfe_u32 v6, v5, 1, 3")
        A(f"v_xor_b32 v6, v6, v4")
        A(f"v_lshlrev_b32 v6, 4, v6")
        A(f"v_mul_lo_u32 v7, v5, s25")
        A(f"v_add_u32 v{10+e}, v7, v6")
    A("v_lshrrev_b32 v3, 4, v2")
    A("v_and_b32 v4, 15, v2")
    A("v_lshlrev_b32 v6, 2, v3")
    A("v_xor_b32 v6, v6, v4")
    A("v_lshlrev_b32 v6, 4, v6")
    A(f"s_lshl_b32 s24, s{P}, 4")
    A("s_movk_i32 s25, 3072")
    for e in range(4):
        A(f"v_add_u32 v5, s24, v3")
        if e: A(f"v_add_u32 v5, {4*e}, v5")
        A(f"v_mul_lo_u32 v7, v5, s25")
        A(f"v_add_u32 v{14+e}, v7, v6")
    A("s_mul_i32 s32, s30, 163840")
    A("s_lshl_b32 s33, s31, 8")
    A(f"s_lshl_b32 s34, s{P}, 12")
    A("s_waitcnt lgkmcnt(0)")
    make_srd(A, 4, SZ["q"]); make_srd(A, 8, SZ["w1"])
    A("s_mul_i32 s35, s30, 3")
    A("s_add_u32 s35, s35, s31")
    A("s_mul_hi_u32 s36, s35, 0x1999999A")
    A("s_mul_i32 s36, s36, 10")
    A("s_sub_u32 s35, s35, s36")
    A("s_lshl_b32 s36, s35, 7")
    A("s_add_u32 s32, s32, s36")
    A(f"s_mul_i32 s36, s35, {64*3072}")
    A("s_add_u32 s33, s33, s36")
    def issue(c):
        st = (c & 3) * STAGE
        for e in range(4):
            A(f"s_add_u32 m0, s34, {st + e*1024}")
            A("s_nop 0")
            A(f"buffer_load_dwordx4 v{10+e}, s[4:7], s32 offen lds")
            A(f"s_add_u32 m0, s34, {st + 16384 + e*1024}")
            A("s_nop 0")
            A(f"buffer_load_dwordx4 v{14+e}, s[8:11], s33 offen lds")
        A("s_add_u32 s32, s32, 128")
        A(f"s_add_u32 s33, s33, {64*3072}")
        A("s_add_u32 s35, s35, 1")
        A("s_cmp_eq_u32 s35, 10")
        A("s_cselect_b32 s36, 1280, 0")
        A("s_sub_u32 s32, s32, s36")
        A(f"s_cselect_b32 s36, {640*3072}, 0") if False else None
        A("s_cmp_eq_u32 s35, 10")
        A(f"s_cselect_b32 s36, {640*3072}, 0")
        A("s_sub_u32 s33, s33, s36")
        A("s_cmp_eq_u32 s35, 10")
        A("s_cselect_b32 s35, 0, s35")
    for c in range(2): issue(c)
    make_srd(A, 12, SZ["b1"])
    make_srd(A, 16, 2048*8, add=WS_ST)
    make_srd(A, 20, 12*5*128*4, add=WS_CS)
    setup_flag_srds(A)
    for c in range(10):
        n_out = 8 if c <= 8 else 0
        A(f"s_waitcnt vmcnt({n_out})")
        stamp(A, 2 + 2*c)
        A("s_barrier")
        stamp(A, 3 + 2*c)
        if c == 0: dbgt(A, 2, 8, 4)
        if c == 9: dbgt(A, 3, 8, 4)
        if c + 2 < 10: issue(c + 2)
    get_nonce(A, 20)
    A("v_and_b32 v8, 31, v2")
    A(f"s_lshl_b32 s24, s30, 2")
    A(f"s_add_u32 s24, s24, s{P}")
    A("s_lshl_b32 s24, s24, 2")
    A(f"s_add_u32 s24, s24, {F_ST}")
    A("s_mul_i32 s25, s31, 20")
    A(f"s_add_u32 s25, s25, {F_CS - 4}")
    A("v_lshlrev_b32 v20, 2, v2")
    A("v_add_u32 v20, s25, v20")
    A("v_mov_b32 v21, s24")
    A("v_cmp_eq_u32 vcc, 0, v2")
    A("s_nop 1")
    A("v_cndmask_b32 v20, v20, v21, vcc")
    poll_flags(A, 20, 21, 6)
    A(f"s_lshl_b32 s24, s30, 7")
    A(f"s_lshl_b32 s25, s{P}, 5")
    A("s_add_u32 s24, s24, s25")
    A("v_add_u32 v9, s24, v8")
    A("v_lshlrev_b32 v9, 3, v9")
    A("buffer_load_dwordx2 v[30:31], v9, s[16:19], 0 offen sc1")
    A("s_mul_i32 s24, s31, 2560")
    A(f"s_lshl_b32 s25, s{P}, 7")
    A("s_add_u32 s24, s24, s25")
    A("v_lshlrev_b32 v9, 2, v8")
    for k in range(5):
        A(f"buffer_load_dword v{32+k}, v9, s[20:23], s24 offen offset:{512*k} sc1")
    A("s_lshl_b32 s24, s31, 7")
    A(f"s_lshl_b32 s25, s{P}, 5")
    A("s_add_u32 s24, s24, s25")
    A("v_add_u32 v9, s24, v8")
    A("v_lshlrev_b32 v9, 1, v9")
    A("buffer_load_ushort v45, v9, s[12:15], 0 offen")
    A("s_waitcnt vmcnt(0)")
    A("v_and_b32 v40, 0xffff, v30")
    A("v_xor_b32 v40, 0x8000, v40")
    A("v_lshl_or_b32 v40, v40, 16, v40")
    A("v_lshrrev_b32 v41, 16, v30")
    A("v_mov_b32 v42, 0"); A("v_mov_b32 v43, 0")
    A("v_add_f32 v32, v32, v33"); A("v_add_f32 v34, v34, v35"); A("v_add_f32 v32, v32, v36"); A("v_add_f32 v32, v32, v34")
    A("v_cvt_pk_bf16_f32 v44, v32, v32")
    A("v_and_b32 v46, 0xffff0000, v44")
    A("v_sub_f32 v46, v32, v46")
    A("v_cvt_pk_bf16_f32 v44, v32, v46")
    A("v_mov_b32 v46, 0"); A("v_mov_b32 v47, 0")
    A("v_cmp_gt_u32 vcc, 32, v2")
    A("s_nop 1")
    for r in (40, 41, 44, 45):
        A(f"v_cndmask_b32 v{r}, 0, v{r}, vcc")
    A("v_lshlrev_b32 v48, 4, v2")
    A(f"s_lshl_b32 s24, s{P}, 10")
    A(f"s_add_u32 s24, s24, {EXT}")
    A("v_add_u32 v48, s24, v48")
    A("ds_write_b128 v48, v[44:47]")
    A("ds_write_b128 v48, v[40:43] offset:4096")
    A("s_waitcnt lgkmcnt(0)")
    stamp(A, 22)
    A("s_barrier")
    stamp(A, 23)

def g1_consumer(A):
    load_ptr(A, 16, "ws")
    A(f"s_and_b32 s34, s{S_WAVE}, 1")
    A(f"s_lshr_b32 s35, s{S_WAVE}, 1")
    A("v_and_b32 v2, 63, v0")
    A("v_lshrrev_b32 v3, 4, v2")
    A("v_and_b32 v4, 15, v2")
    A("v_lshrrev_b32 v5, 2, v4")
    A("v_and_b32 v7, 1, v3")
    A("v_lshlrev_b32 v8, 1, v7")
    A("v_bfe_u32 v7, v4, 1, 1")
    A("v_add_u32 v8, v8, v7")
    A("v_lshlrev_b32 v8, 4, v8")
    A("v_and_b32 v7, 1, v4")
    A("v_lshl_add_u32 v8, v7, 3, v8")
    A("v_lshrrev_b32 v7, 1, v3")
    A("v_lshl_add_u32 v9, v7, 3, v5")
    A("v_lshl_add_u32 v8, v9, 8, v8")
    A("v_add_u32 v8, 16384, v8")
    A("s_lshl_b32 s24, s34, 1")
    for fi in range(2):
        A(f"s_add_u32 s25, s24, {fi}")
        A(f"v_xor_b32 v6, s25, v5")
        A(f"v_lshl_add_u32 v{10+fi}, v6, 6, v8")
        A(f"v_add_u32 v{12+fi}, 0x10000, v{10+fi}")
    A("v_and_b32 v3, 31, v2")
    A("s_lshl_b32 s24, s35, 6")
    A("v_add_u32 v3, s24, v3")
    A("v_lshrrev_b32 v4, 5, v2")
    A("v_bfe_u32 v5, v3, 1, 3")
    A("v_xor_b32 v5, v5, v4")
    A("v_lshlrev_b32 v5, 4, v5")
    A("v_lshl_add_u32 v14, v3, 7, v5")
    for s_ in range(1, 4):
        A(f"v_xor_b32 v{14+s_}, {32*s_}, v14")
    for s_ in range(4):
        A(f"v_add_u32 v{18+s_}, 0x10000, v{14+s_}")
    A("v_bfe_u32 v3, v2, 4, 1")
    A("v_lshlrev_b32 v3, 10, v3")
    A("v_and_b32 v4, 15, v2")
    A("v_lshl_add_u32 v3, v4, 4, v3")
    A("v_lshrrev_b32 v4, 5, v2")
    A("v_lshl_add_u32 v22, v4, 8, v3")
    A("v_lshlrev_b32 v23, 4, v2")
    A(f"v_add_u32 v23, {EXT}, v23")
    A("s_lshl_b32 s24, s34, 11")
    A("v_add_u32 v24, s24, v23")
    A("s_lshl_b32 s24, s35, 11")
    A("v_add_u32 v25, s24, v23")
    A("s_lshl_b32 s24, s30, 1")
    A("s_add_u32 s24, s24, s35")
    A("s_mul_i32 s33, s24, 24")
    A("s_mul_i32 s24, s24, 48")
    A("s_lshl_b32 s25, s31, 2")
    A("s_add_u32 s24, s24, s25")
    A("s_lshl_b32 s25, s34, 1")
    A("s_add_u32 s24, s24, s25")
    A("s_lshl_b32 s36, s24, 12")
    A("s_add_u32 s37, s36, 4096")
    A("s_lshl_b32 s25, s31, 1")
    A("s_add_u32 s33, s33, s25")
    A("s_add_u32 s33, s33, s34")
    A("s_lshl_b32 s33, s33, 2")
    A(f"s_add_u32 s33, s33, {F_H}")
    A("s_waitcnt lgkmcnt(0)")
    make_srd(A, 16, 32*48*4096, add=WS_H)
    setup_flag_srds(A)
    skip = A.uid("nn")
    A(f"s_or_b32 s24, s2, s{S_WAVE}")
    A("s_cmp_lg_u32 s24, 0")
    A(f"s_cbranch_scc1 {skip}")
    A("s_memrealtime s[24:25]")
    A("s_waitcnt lgkmcnt(0)")
    A("s_or_b32 s24, s24, 1")
    A("v_mov_b32 v26, s24"); A("v_mov_b32 v27, 0")
    A("s_mov_b64 exec, 1")
    A(f"buffer_store_dword v26, v27, {s(S_DBG,4)}, 0 offen sc1")
    A("s_mov_b64 exec, -1")
    A.label(skip)
    ACC = 64
    FR = [128, 144, 160]
    def reads(c, s_, fs):
        st = c & 3; hi = st >> 1; off = (st & 1) * STAGE
        out = []
        base = FR[fs]
        for fi in range(2):
            va = (12 if hi else 10) + fi
            for h in range(2):
                out.append(f"ds_read_b64_tr_b16 {v(base+4*fi+2*h,2)}, v{va} offset:{off + s_*4096 + h*1024}")
        vb = (18 if hi else 14) + s_
        for ti in range(2):
            out.append(f"ds_read_b128 {v(base+8+4*ti,4)}, v{vb} offset:{off + ti*4096}")
        return out
    def mfmas(fs, first):
        base = FR[fs]
        out = []
        for fi in range(2):
            for ti in range(2):
                acc = v(ACC+(fi*2+ti)*16, 16)
                out.append(f"v_mfma_f32_32x32x16_bf16 {acc}, {v(base+4*fi,4)}, {v(base+8+4*ti,4)}, {'0' if first else acc}")
        return out
    steps = [(c, s_) for c in range(10) for s_ in range(4)]
    NS = len(steps)
    for q in range(NS + 2):
        if q < NS:
            c, s_ = steps[q]
            if s_ == 0:
                A("s_waitcnt lgkmcnt(0)")
                stamp(A, 2 + 2*c)
                A("s_barrier")
                stamp(A, 3 + 2*c)
            R = reads(c, s_, q % 3)
        else:
            R = []
        if q >= 2:
            if q < NS and steps[q][1] == 0: pass
            elif q - 1 < NS: A("s_waitcnt lgkmcnt(6)")
            else: A("s_waitcnt lgkmcnt(0)")
            M = mfmas((q-2) % 3, q - 2 == 0)
        else:
            M = []
        k = 0
        for i, m in enumerate(M):
            A(m)
            for _ in range(2):
                if k < len(R): A(R[k]); k += 1
        while k < len(R):
            A(R[k]); k += 1
    get_nonce(A, 26)
    stamp(A, 22)
    A("s_barrier")
    stamp(A, 23)
    base = FR[1]
    for fi in range(2):
        A(f"ds_read_b128 {v(base+4*fi,4)}, v24 offset:{1024*fi}")
    for ti in range(2):
        A(f"ds_read_b128 {v(base+8+4*ti,4)}, v25 offset:{4096 + 1024*ti}")
    A("s_waitcnt lgkmcnt(0)")
    for m in mfmas(1, False): A(m)
    A("s_nop 15")
    for fi in range(2):
        for ti in range(2):
            a0 = ACC + (fi*2+ti)*16
            o = 176 + (fi*2+ti)*8
            for r in range(0, 16, 2):
                A(f"v_mul_f32 v{a0+r}, v{a0+r}, abs(v{a0+r})")
                A(f"v_mul_f32 v{a0+r+1}, v{a0+r+1}, abs(v{a0+r+1})")
                A(f"v_cvt_pk_bf16_f32 v{o+r//2}, v{a0+r}, v{a0+r+1}")
                A(f"v_pk_max_i16 v{o+r//2}, v{o+r//2}, 0")
            for cc in range(2):
                A(f"buffer_store_dwordx4 {v(o+4*cc,4)}, v22, s[16:19], s{36+fi} offen offset:{cc*512 + ti*2048} sc1")
    stamp(A, 24)
    A("s_waitcnt vmcnt(0)")
    signal_flag(A, 33, 26)
    stamp(A, 25)

H_CSP = 0
H_STS = 4096
H_SK = 4608
H_KV = 10240
H_T1 = H_KV + 5*17408
H_T2 = H_T1 + 16384
H_W2 = H_KV
def helper(A):
    J = 30
    W = S_WAVE
    A(f"s_sub_u32 s{J}, s2, 192")
    load_ptr(A, 4, "q"); load_ptr(A, 8, "w1"); load_ptr(A, 12, "ws"); load_ptr(A, 16, "ws")
    A("v_and_b32 v2, 63, v0")
    A("v_lshrrev_b32 v3, 4, v2")
    A("v_and_b32 v4, 15, v2")
    A(f"s_lshl_b32 s24, s{J}, 5")
    A(f"s_lshl_b32 s25, s{W}, 2")
    A("s_add_u32 s24, s24, s25")
    A("v_add_u32 v5, s24, v3")
    A("s_movk_i32 s25, 1280")
    A("v_mul_lo_u32 v6, v5, s25")
    A("v_lshl_add_u32 v6, v4, 4, v6")
    A(f"s_mul_hi_u32 s32, s{J}, 0x33333334")
    A("s_mul_i32 s33, s32, 5")
    A(f"s_sub_u32 s33, s{J}, s33")
    A("s_lshl_b32 s24, s33, 7")
    A(f"s_lshl_b32 s25, s{W}, 4")
    A("s_add_u32 s24, s24, s25")
    A("v_add_u32 v8, s24, v3")
    A("s_movk_i32 s25, 3072")
    A("v_mul_lo_u32 v8, v8, s25")
    A("v_lshl_add_u32 v8, v4, 4, v8")
    A("s_lshl_b32 s34, s32, 8")
    A("s_waitcnt lgkmcnt(0)")
    make_srd(A, 4, SZ["q"]); make_srd(A, 8, SZ["w1"])
    for e in range(5):
        A(f"buffer_load_dwordx4 {v(16+4*e,4)}, v6, s[4:7], 0 offen offset:{256*e}")
    for e in range(4):
        A(f"s_add_u32 s35, s34, {4*3072*e}")
        A(f"buffer_load_dwordx4 {v(36+4*e,4)}, v8, s[8:11], s35 offen")
    make_srd(A, 12, 2048*8, add=WS_ST)
    make_srd(A, 16, 12*5*128*4, add=WS_CS)
    load_ptr(A, 4, "k"); load_ptr(A, 8, "v"); load_ptr(A, 20, "sk"); load_ptr(A, 52, "ws")
    setup_flag_srds(A)
    make_srd(A, 4, SZ["k"]); make_srd(A, 8, SZ["v"]); make_srd(A, 20, SZ["sk"])
    make_srd(A, 52, 640*4096, add=WS_KV)
    A("v_lshrrev_b32 v9, 3, v2")
    A("v_and_b32 v10, 7, v2")
    A("s_movk_i32 s25, 1280")
    A("v_mul_lo_u32 v9, v9, s25")
    A("v_lshl_add_u32 v9, v10, 4, v9")
    A(f"s_mul_i32 s24, s{W}, 10240")
    A("v_add_u32 v11, s24, v9")
    A("v_add_u32 v10, -10240, v11")
    A("s_mov_b32 s24, 71680")
    A(f"s_cmp_eq_u32 s{W}, 0")
    A("s_cselect_b32 s24, 61440, s24")
    A("v_add_u32 v12, s24, v9")
    A(f"s_lshl_b32 s36, s{W}, 10")
    A("s_add_u32 s37, s36, 9216")
    A("s_movk_i32 s38, 7168")
    A(f"s_cmp_eq_u32 s{W}, 1")
    A("s_cselect_b32 s38, 8192, s38")
    A(f"s_cmp_eq_u32 s{W}, 2")
    A("s_cselect_b32 s38, 16384, s38")
    A("s_mov_b32 s39, 0x3f803f80")
    A("v_mov_b32 v57, 0"); A("v_mov_b32 v58, 0"); A("v_mov_b32 v59, 0"); A("v_mov_b32 v60, 0")
    A("s_waitcnt vmcnt(4)")
    stamp(A, 5)
    dbgt(A, 4, 200, 0)
    for r in range(16, 36):
        a_ = 57 + 2*(r & 1)
        A(f"v_dot2_f32_bf16 v{a_}, v{r}, s39, v{a_}")
        A(f"v_dot2_f32_bf16 v{a_+1}, v{r}, v{r}, v{a_+1}")
    A("s_nop 3")
    A("v_add_f32 v57, v57, v59"); A("v_add_f32 v58, v58, v60")
    for sh in (8, 4, 2, 1):
        A("s_nop 1")
        A(f"v_add_f32_dpp v57, v57, v57 row_ror:{sh} row_mask:0xf bank_mask:0xf")
        A(f"v_add_f32_dpp v58, v58, v58 row_ror:{sh} row_mask:0xf bank_mask:0xf")
    A("s_mov_b32 s24, 0x3acccccd")
    A("v_mul_f32 v57, s24, v57"); A("v_mul_f32 v58, s24, v58")
    A("v_fma_f32 v58, -v57, v57, v58")
    A("v_max_f32 v58, 0, v58")
    A("v_cvt_pk_bf16_f32 v59, v57, v58")
    A("v_and_b32 v60, 0xffff0000, v59")
    A("v_add_f32 v60, 0x3727c5ac, v60")
    A("v_cvt_pk_bf16_f32 v60, v60, v60")
    A("v_and_b32 v60, 0xffff0000, v60")
    A("v_sqrt_f32 v60, v60")
    A("s_nop 0")
    A("v_cvt_pk_bf16_f32 v60, v60, v60")
    A("v_and_b32 v60, 0xffff0000, v60")
    A("v_rcp_f32 v63, v60")
    A("v_and_b32 v62, 0xffff, v59")
    A("v_or_b32 v62, v62, v60")
    A(f"s_lshl_b32 s24, s{W}, 5")
    A("v_lshlrev_b32 v61, 3, v3")
    A("v_add_u32 v61, s24, v61")
    A("s_mov_b64 exec, 0x0001000100010001") if False else None
    A("s_mov_b32 exec_lo, 0x00010001"); A("s_mov_b32 exec_hi, 0x00010001")
    A(f"ds_write_b64 v61, v[62:63] offset:{H_STS}")
    A("s_mov_b64 exec, -1")
    stamp(A, 6)
    A("s_waitcnt vmcnt(0)")
    for d in range(4):
        unpack(A, 64 + 2*d, 36 + d)
    for e in range(1, 4):
        for d in range(4):
            unpack(A, 72, 36 + 4*e + d)
            A(f"v_add_f32 v{64+2*d}, v{64+2*d}, v72")
            A(f"v_add_f32 v{65+2*d}, v{65+2*d}, v73")
    nodma = A.uid("nodma")
    A(f"s_cmp_eq_u32 s{W}, 7")
    A(f"s_cbranch_scc1 {nodma}")
    nosk = A.uid("nosk")
    A(f"s_cmp_lt_u32 s{W}, 2")
    A(f"s_cbranch_scc1 {nosk}")
    A(f"s_sub_u32 s24, s{W}, 2")
    A("s_lshl_b32 s24, s24, 10")
    A(f"s_add_u32 m0, s24, {H_SK}")
    A("v_lshlrev_b32 v13, 4, v2")
    A("buffer_load_dwordx4 v13, s[20:23], s24 offen lds")
    A.label(nosk)
    for i in range(5):
        A(f"s_mul_i32 s24, s{J}, 5")
        A(f"s_add_u32 s24, s24, {i}")
        A("s_lshr_b32 s25, s24, 5")
        A("s_and_b32 s24, s24, 31")
        A("s_mul_i32 s24, s24, 81920")
        A("s_lshl_b32 s25, s25, 7")
        A("s_add_u32 s24, s24, s25")
        base = H_KV + i*17408
        A("v_add_u32 v13, s24, v10")
        A(f"s_add_u32 m0, s36, {base}")
        A("v_add_u32 v14, s24, v11")
        A("buffer_load_dwordx4 v13, s[4:7], 0 offen lds")
        A(f"s_add_u32 m0, s37, {base}")
        A("v_add_u32 v15, s24, v12")
        A("buffer_load_dwordx4 v14, s[8:11], 0 offen lds")
        noc = A.uid("noc")
        A(f"s_cmp_ge_u32 s{W}, 3")
        A(f"s_cbranch_scc1 {noc}")
        A(f"s_add_u32 m0, s38, {base}")
        isv = A.uid("isv")
        A(f"s_cmp_eq_u32 s{W}, 2")
        A(f"s_cbranch_scc1 {isv}")
        A("buffer_load_dwordx4 v15, s[4:7], 0 offen lds")
        A(f"s_branch {noc}")
        A.label(isv)
        A("buffer_load_dwordx4 v15, s[8:11], 0 offen lds")
        A.label(noc)
    A.label(nodma)
    for d in range(8):
        A(f"v_mov_b32 v{72+d}, v{64+d}")
    A("s_nop 1")
    for d in range(8):
        A(f"v_permlane32_swap_b32 v{64+d}, v{72+d}")
    A("s_nop 1")
    for d in range(8):
        A(f"v_add_f32 v{64+d}, v{64+d}, v{72+d}")
    for d in range(8):
        A(f"v_mov_b32 v{72+d}, v{64+d}")
    A("s_nop 1")
    for d in range(8):
        A(f"v_permlane16_swap_b32 v{64+d}, v{72+d}")
    A("s_nop 1")
    for d in range(8):
        A(f"v_add_f32 v{64+d}, v{64+d}, v{72+d}")
    A(f"s_lshl_b32 s24, s{W}, 9")
    A("v_lshlrev_b32 v74, 5, v4")
    A("v_add_u32 v74, s24, v74")
    A("s_mov_b64 exec, 0xffff")
    A(f"ds_write_b128 v74, v[64:67] offset:{H_CSP}")
    A(f"ds_write_b128 v74, v[68:71] offset:{H_CSP+16}")
    A("s_mov_b64 exec, -1")
    def wait_tiles(k, lg=True):
        L3 = A.uid("w3"); LE = A.uid("we")
        A(f"s_cmp_lt_u32 s{W}, 3")
        A(f"s_cbranch_scc1 {L3}")
        A(f"s_waitcnt vmcnt({2*k})" + (" lgkmcnt(0)" if lg else ""))
        A(f"s_branch {LE}")
        A.label(L3)
        A(f"s_waitcnt vmcnt({3*k})" + (" lgkmcnt(0)" if lg else ""))
        A.label(LE)
    wait_tiles(4)
    stamp(A, 7)
    A("s_barrier")
    stamp(A, 8)
    pub = A.uid("pub")
    A(f"s_cmp_lg_u32 s{W}, 7")
    A(f"s_cbranch_scc1 {pub}")
    A("v_lshlrev_b32 v75, 4, v2")
    for k in range(8):
        A(f"ds_read_b128 {v(76+4*k,4)}, v75 offset:{H_CSP + 512*k}")
    A("v_lshlrev_b32 v108, 3, v2")
    A(f"ds_read_b64 v[110:111], v108 offset:{H_STS}")
    get_nonce(A, 112)
    A("s_waitcnt lgkmcnt(0)")
    for k in range(1, 8):
        for d in range(4):
            A(f"v_add_f32 v{76+d}, v{76+d}, v{76+4*k+d}")
    A("v_mov_b32 v109, 0x80000000")
    A("v_cmp_gt_u32 vcc, 32, v2")
    A(f"s_lshl_b32 s24, s{J}, 8")
    A("v_add_u32 v108, s24, v108")
    A("v_cndmask_b32 v108, v109, v108, vcc")
    A("buffer_store_dwordx2 v[110:111], v108, s[12:15], 0 offen sc1")
    nocs = A.uid("nocs")
    A(f"s_cmp_ge_u32 s{J}, 60")
    A(f"s_cbranch_scc1 {nocs}")
    A(f"s_lshl_b32 s24, s{J}, 9")
    A("v_cndmask_b32 v75, v109, v75, vcc")
    A("buffer_store_dwordx4 v[76:79], v75, s[16:19], s24 offen sc1")
    A.label(nocs)
    A("s_waitcnt vmcnt(0)")
    A(f"s_lshl_b32 s24, s{J}, 2")
    signal_flag(A, 24, 112, imm=F_ST)
    signal_flag(A, 24, 112, imm=F_CS)
    dbgt(A, 5, 200, 7)
    A.label(pub)
    stamp(A, 2)
    A("v_lshrrev_b32 v1, 3, v0")
    A("v_and_b32 v5, 7, v0")
    A("v_lshlrev_b32 v6, 7, v1")
    A("v_lshl_add_u32 v6, v5, 4, v6")
    A(f"v_add_u32 v6, {H_KV}, v6")
    A("v_sub_u32 v7, 63, v1")
    A("v_bfe_u32 v8, v7, 1, 1")
    A("v_bfe_u32 v9, v7, 3, 1")
    A("v_lshl_or_b32 v8, v9, 1, v8")
    A("v_lshlrev_b32 v8, 1, v8")
    A("v_xor_b32 v8, v8, v5")
    A("v_lshlrev_b32 v8, 4, v8")
    A("v_lshl_add_u32 v7, v7, 7, v8")
    A(f"v_add_u32 v7, {H_T1}, v7")
    A("v_lshrrev_b32 v3, 4, v2")
    A("v_and_b32 v4, 15, v2")
    A(f"s_and_b32 s24, s{W}, 3")
    A(f"s_lshr_b32 s25, s{W}, 2")
    A("v_lshrrev_b32 v8, 2, v4")
    A("v_lshl_add_u32 v8, v3, 3, v8")
    A("s_lshl_b32 s26, s25, 5")
    A("v_add_u32 v8, s26, v8")
    A("v_bfe_u32 v9, v4, 3, 1")
    A("v_and_b32 v10, 1, v3")
    A("v_lshl_or_b32 v9, v10, 1, v9")
    A("v_lshlrev_b32 v9, 1, v9")
    A("v_bfe_u32 v10, v4, 1, 1")
    A("s_lshl_b32 s26, s24, 1")
    A("v_or_b32 v10, s26, v10")
    A("v_xor_b32 v10, v10, v9")
    A("v_lshlrev_b32 v10, 4, v10")
    A("v_and_b32 v9, 1, v4")
    A("v_lshl_or_b32 v10, v9, 3, v10")
    A("v_lshl_add_u32 v8, v8, 7, v10")
    A(f"v_add_u32 v8, {H_T1}, v8")
    A("v_bfe_u32 v9, v4, 1, 2")
    A("v_xor_b32 v9, v9, v3")
    A("v_lshlrev_b32 v9, 4, v9")
    A("v_lshl_add_u32 v9, v4, 6, v9")
    A(f"s_lshl_b32 s26, s{W}, 10")
    A(f"s_add_u32 s26, s26, {H_T2}")
    A("v_add_u32 v9, s26, v9")
    A("v_lshlrev_b32 v10, 4, v2")
    A("v_add_u32 v10, s26, v10")
    A("v_lshrrev_b32 v11, 2, v2")
    A("v_and_b32 v12, 3, v2")
    A("v_bfe_u32 v13, v11, 1, 2")
    A("v_xor_b32 v12, v12, v13")
    A("v_lshlrev_b32 v12, 4, v12")
    A("s_lshl_b32 s26, s24, 4")
    A("v_add_u32 v11, s26, v11")
    A("v_lshl_add_u32 v11, v11, 12, v12")
    A("s_lshl_b32 s26, s25, 6")
    A("v_add_u32 v11, s26, v11")
    A("v_lshlrev_b32 v12, 6, v5")
    A("s_mov_b32 s35, -1")
    S = lambda j, cp: 64 + (j*4+cp)*2
    K = lambda i, cp: 96 + (i*4+cp)*2
    V = lambda cp: 128 + cp*2
    for i in range(5):
        base = H_KV + i*17408
        A(f"s_mul_i32 s24, s{J}, 5")
        A(f"s_add_u32 s24, s24, {i}")
        A("s_lshr_b32 s21, s24, 5")
        A("s_and_b32 s20, s24, 31")
        for jj in range(4):
            A(f"ds_read_b128 {v(16+4*jj,4)}, v6 offset:{(8-3+jj)*128}")
        A(f"ds_read_b128 {v(32,4)}, v6 offset:9216")
        A("v_add_u32 v6, 17408, v6")
        same = A.uid("samecg")
        A("s_cmp_eq_u32 s21, s35")
        A(f"s_cbranch_scc1 {same}")
        A("s_mov_b32 s35, s21")
        A("s_lshl_b32 s24, s21, 9")
        A("v_add_u32 v13, s24, v12")
        for q in range(4):
            A(f"ds_read_b128 {v(44+4*q,4)}, v13 offset:{H_SK + 16*q}")
        A("s_waitcnt lgkmcnt(0)")
        for cp in range(4):
            for hh in range(2):
                d0 = 44 + 2*(2*cp+hh)
                A(f"v_lshlrev_b32 v{S(0,cp)+hh}, 16, v{d0}")
                A(f"v_and_b32 v{S(1,cp)+hh}, 0xffff0000, v{d0}")
                A(f"v_lshlrev_b32 v{S(2,cp)+hh}, 16, v{d0+1}")
                A(f"v_and_b32 v{S(3,cp)+hh}, 0xffff0000, v{d0+1}")
        A.label(same)
        A("s_waitcnt lgkmcnt(0)")
        for ii in range(4):
            for cp in range(4):
                unpack(A, K(ii,cp), 16+4*ii+cp)
        for cp in range(4):
            unpack(A, V(cp), 32+cp)
        for cp in range(4):
            ac = 152 + 4*cp
            A(f"v_pk_mul_f32 {v(ac,2)}, {v(K(0,cp),2)}, {v(S(3,cp),2)}")
        for cp in range(4):
            ac = 152 + 4*cp; pk = 168 + cp
            A(f"v_cvt_pk_bf16_f32 v{pk}, v{ac}, v{ac+1}")
        for cp in range(4):
            unpack(A, 152 + 4*cp, 168 + cp)
        for step, j in ((1, 2), (2, 1), (3, 0)):
            for cp in range(4):
                tp = 152 + 4*cp + 2
                A(f"v_pk_mul_f32 {v(tp,2)}, {v(K(step,cp),2)}, {v(S(j,cp),2)}")
            for cp in range(4):
                tp = 152 + 4*cp + 2; pk = 168 + cp
                A(f"v_cvt_pk_bf16_f32 v{pk}, v{tp}, v{tp+1}")
            for cp in range(4):
                unpack(A, 152 + 4*cp + 2, 168 + cp)
            for cp in range(4):
                ac = 152 + 4*cp; tp = ac + 2
                A(f"v_pk_add_f32 {v(ac,2)}, {v(ac,2)}, {v(tp,2)}")
            for cp in range(4):
                ac = 152 + 4*cp; pk = 168 + cp
                A(f"v_cvt_pk_bf16_f32 v{pk}, v{ac}, v{ac+1}")
            for cp in range(4):
                unpack(A, 152 + 4*cp, 168 + cp)
        for cp in range(4):
            ac = 152 + 4*cp
            A(f"v_pk_mul_f32 {v(ac,2)}, {v(ac,2)}, {v(V(cp),2)}")
        for cp in range(4):
            ac = 152 + 4*cp
            A(f"v_cvt_pk_bf16_f32 v{172+cp}, v{ac}, v{ac+1}")
        t1 = (i & 1)*8192
        A(f"ds_write_b128 v7, {v(172,4)} offset:{t1}")
        if i < 4:
            wait_tiles(3 - i)
        else:
            A("s_waitcnt lgkmcnt(0)")
        A("s_barrier")
        if i == 3:
            now2 = A.uid("now2")
            A(f"s_cmp_ge_u32 s{J}, 48")
            A(f"s_cbranch_scc1 {now2}")
            load_ptr(A, 4, "w2")
            A(f"s_mul_i32 s27, s{J}, 40960")
            A("s_waitcnt lgkmcnt(0)")
            make_srd(A, 4, SZ["w2"])
            for e in range(5):
                A(f"s_mul_i32 s24, s{W}, 320")
                A(f"s_add_u32 s24, s24, {64*e}")
                A("v_add_u32 v13, s24, v2")
                A("v_mul_u32_u24 v14, 52429, v13")
                A("v_lshrrev_b32 v14, 22, v14")
                A("v_mul_u32_u24 v15, 80, v14")
                A("v_sub_u32 v15, v13, v15")
                A("v_bfe_u32 v13, v14, 1, 2")
                A("v_lshlrev_b32 v13, 1, v13")
                A("v_xor_b32 v15, v15, v13")
                A("v_mul_u32_u24 v14, 1280, v14")
                A("v_lshl_add_u32 v14, v15, 4, v14")
                A("s_lshl_b32 s24, s24, 4")
                A(f"s_add_u32 m0, s24, {H_W2}")
                A("s_nop 0")
                A("buffer_load_dwordx4 v14, s[4:7], s27 offen lds")
            A.label(now2)
        A(f"ds_read_b64_tr_b16 v[16:17], v8 offset:{t1}")
        A(f"ds_read_b64_tr_b16 v[18:19], v8 offset:{t1+512}")
        A("s_sub_u32 s24, 1984, 0")
        A("s_lshl_b32 s25, s20, 6")
        A("s_sub_u32 s24, s24, s25")
        A("s_lshl_b32 s24, s24, 1")
        A("s_lshl_b32 s25, s21, 18")
        A("s_add_u32 s24, s24, s25")
        A("s_waitcnt lgkmcnt(0)")
        A(f"ds_write_b128 v9, v[16:19]")
        A("s_waitcnt lgkmcnt(0)")
        A(f"ds_read_b128 {v(20+4*(i&1),4)}, v10")
        A("s_waitcnt lgkmcnt(0)")
        A(f"buffer_store_dwordx4 {v(20+4*(i&1),4)}, v11, s[52:55], s24 offen sc1")
        stamp(A, 11 + i)
    A("s_waitcnt vmcnt(0)")
    A("s_barrier")
    get_nonce(A, 112)
    w1 = A.uid("w1")
    A(f"s_cmp_lg_u32 s{W}, 0")
    A(f"s_cbranch_scc1 {w1}")
    A(f"s_lshl_b32 s24, s{J}, 2")
    signal_flag(A, 24, 16, imm=F_KV)
    A.label(w1)
    stamp(A, 3)
    dbgt(A, 6, 200, 0)
    done = A.uid("hdone")
    A(f"s_cmp_ge_u32 s{J}, 48")
    A(f"s_cbranch_scc1 {done}")
    load_ptr(A, 16, "ws")
    A("v_lshrrev_b32 v3, 4, v2")
    A("v_and_b32 v4, 15, v2")
    A("v_lshrrev_b32 v5, 1, v3")
    A("v_lshlrev_b32 v5, 4, v5")
    A("v_and_b32 v6, 1, v3")
    A("v_lshl_add_u32 v5, v6, 2, v5")
    A("v_lshrrev_b32 v6, 2, v4")
    A("v_add_u32 v5, v5, v6")
    A("v_bfe_u32 v7, v5, 1, 2")
    A("v_lshlrev_b32 v7, 1, v7")
    A("v_mul_u32_u24 v5, 1280, v5")
    A("v_and_b32 v6, 1, v4")
    A("v_lshl_add_u32 v5, v6, 3, v5")
    A("v_bfe_u32 v6, v4, 1, 1")
    A("s_waitcnt lgkmcnt(0)")
    make_srd(A, 16, 8*48*5*1024, add=WS_W2)
    for e in range(5):
        A(f"s_mul_i32 s24, s{W}, 10")
        A(f"s_add_u32 s24, s24, {2*e}")
        A("v_or_b32 v8, s24, v6")
        A("v_xor_b32 v8, v8, v7")
        A("v_lshl_add_u32 v8, v8, 4, v5")
        A(f"ds_read_b64_tr_b16 {v(32+4*e,2)}, v8 offset:{H_W2}")
        A(f"ds_read_b64_tr_b16 {v(34+4*e,2)}, v8 offset:{H_W2 + 8*1280}")
    A(f"s_mul_i32 s23, s{W}, 245760")
    A(f"s_mul_i32 s24, s{J}, 5120")
    A("s_add_u32 s23, s23, s24")
    A("v_lshlrev_b32 v7, 4, v2")
    A("v_add_u32 v8, 4096, v7")
    A("s_waitcnt lgkmcnt(0)")
    for e in range(4):
        A(f"buffer_store_dwordx4 {v(32+4*e,4)}, v7, s[16:19], s23 offen offset:{1024*e} sc1")
    A(f"buffer_store_dwordx4 {v(48,4)}, v8, s[16:19], s23 offen sc1")
    A("s_waitcnt vmcnt(0)")
    A("s_barrier")
    w2 = A.uid("w2")
    A(f"s_cmp_lg_u32 s{W}, 0")
    A(f"s_cbranch_scc1 {w2}")
    A(f"s_lshl_b32 s24, s{J}, 2")
    signal_flag(A, 24, 16, imm=F_W2)
    A.label(w2)
    A.label(done)
    A("s_waitcnt lgkmcnt(0)")
    A("s_barrier")
    stamp(A, 4)

def conv_wave(A):
    SW = 22; SD = 21
    load_ptr(A, 4, "ssm"); load_ptr(A, 8, "ws"); load_ptr(A, 12, "ws"); load_ptr(A, 16, "D")
    A("v_and_b32 v2, 63, v0")
    A(f"s_sub_u32 s20, s{S_WAVE}, 4")
    A("s_lshl_b32 s21, s2, 2")
    A("s_add_u32 s21, s21, s20")
    A(f"s_mul_i32 s22, s20, {WREG}")
    A("s_lshl_b32 s23, s21, 12")
    A("s_waitcnt lgkmcnt(0)")
    A("s_add_u32 s4, s4, s23"); A("s_addc_u32 s5, s5, 0")
    make_srd(A, 4, 4096)
    make_srd(A, 8, 640*4096, add=WS_KV)
    make_srd(A, 12, 640*4096, add=WS_Z)
    make_srd(A, 16, SZ["D"])
    A(f"s_lshl_b32 s24, s{SD}, 1")
    A("v_mov_b32 v3, s24")
    A("buffer_load_ushort v4, v3, s[16:19], 0 offen")
    A("v_lshlrev_b32 v5, 4, v2")
    A("v_mov_b32 v7, 0x80000000")
    A("v_add_u32 v6, -16, v5")
    A("v_cmp_eq_u32 vcc, 0, v2")
    A("s_nop 1")
    A("v_cndmask_b32 v8, v6, v7, vcc")
    for it in range(1, 4):
        A(f"v_add_u32 v{8+it}, {1024*it-16}, v5")
    A("v_mov_b32 v12, 4080")
    A("v_cndmask_b32 v12, v7, v12, vcc")
    for it in range(4):
        d = 16 + 6*it
        A(f"buffer_load_dwordx4 {v(d,4)}, v{8+it}, s[4:7], 0 offen")
        A(f"buffer_load_dwordx2 {v(d+4,2)}, v5, s[4:7], 0 offen offset:{1024*it}")
    A(f"buffer_load_dwordx4 {v(40,4)}, v12, s[4:7], 0 offen")
    A(f"v_mov_b32 v44, 0"); A(f"v_mov_b32 v45, 0")
    A("v_mov_b32 v46, 0"); A("v_mov_b32 v47, 0")
    A("v_lshlrev_b32 v13, 3, v2")
    A(f"v_add_u32 v13, s{SW}, v13")
    A(f"ds_write_b64 v13, v[46:47] offset:{UOFF+4096}")
    A(f"v_add_u32 v14, s{SW}, v5")
    A("v_mov_b32 v15, 4112")
    A("v_cndmask_b32 v15, 0, v15, vcc")
    A(f"v_add_u32 v15, s{SW}, v15")
    for it in range(5):
        d = 16 + 6*it
        A(f"s_waitcnt vmcnt({7 - 2*it if it < 4 else 0})")
        e = 48
        for k in range(5):
            A(f"v_alignbit_b32 v{e+k}, v{d+k+1}, v{d+k}, 16")
        if it == 4: A("s_mov_b64 exec, 3")
        adr = "v14" if it < 4 else "v15"
        off = 16 + 1024*it if it < 4 else 0
        A(f"ds_write_b128 {adr}, {v(e,4)} offset:{off}")
        A(f"v_mov_b32 v54, v{d+1}"); A(f"v_mov_b32 v55, v{d+2}"); A(f"v_mov_b32 v56, v{d+3}"); A(f"v_mov_b32 v57, v{d+4}")
        A(f"ds_write_b128 {adr}, {v(54,4)} offset:{off + COPY}")
        A(f"v_mov_b32 v58, v{e+1}"); A(f"v_mov_b32 v59, v{e+2}"); A(f"v_mov_b32 v60, v{e+3}"); A(f"v_mov_b32 v61, v{e+4}")
        A(f"ds_write_b128 {adr}, {v(58,4)} offset:{off + 2*COPY}")
        A(f"ds_write_b128 {adr}, {v(d+2,4)} offset:{off + 3*COPY}")
        if it == 4: A("s_mov_b64 exec, -1")
    stamp(A, 27)
    A(f"s_lshr_b32 s24, s{SD}, 6")
    A("s_lshl_b32 s24, s24, 5")
    A("s_add_u32 s25, s24, 31")
    A("s_mul_hi_u32 s24, s24, 0x33333334")
    A("s_mul_hi_u32 s25, s25, 0x33333334")
    A("v_add_u32 v16, s24, v2")
    A("v_min_u32 v16, s25, v16")
    A("v_lshlrev_b32 v16, 2, v16")
    A(f"v_add_u32 v16, {F_KV}, v16")
    poll_flags(A, 16, 17, 8)
    stamp(A, 28)
    for i in range(4):
        A(f"s_add_u32 s25, s23, {1024*i}")
        A(f"buffer_load_dwordx4 {v(16+4*i,4)}, v5, s[8:11], s25 offen sc1")
    A("v_and_b32 v6, 15, v2")
    A("v_lshrrev_b32 v7, 4, v2")
    A("v_and_b32 v8, 3, v6")
    A(f"v_mul_u32_u24 v8, {COPY}, v8")
    A("v_and_b32 v9, 12, v6")
    A("v_lshlrev_b32 v9, 1, v9")
    A("v_lshl_add_u32 v9, v7, 4, v9")
    A(f"v_add3_u32 v10, v8, v9, s{SW}")
    A("v_lshlrev_b32 v8, 5, v6")
    A("v_lshlrev_b32 v9, 4, v7")
    A("v_sub_u32 v9, v9, v8")
    A(f"v_add_u32 v9, {480 + UOFF}, v9")
    A(f"v_add_u32 v11, s{SW}, v9")
    A("v_lshlrev_b32 v9, 3, v7")
    A("v_add_u32 v12, v8, v9")
    A(f"v_sub_u32 v13, {504 + UOFF}, v12")
    A(f"v_add_u32 v13, s{SW}, v13")
    A("v_and_b32 v9, 1, v7")
    A("v_lshlrev_b32 v9, 9, v9")
    A("v_add_u32 v9, v9, v8")
    A("v_lshrrev_b32 v12, 1, v7")
    A("v_lshl_add_u32 v12, v12, 4, v9")
    for i in range(4):
        A(f"s_waitcnt vmcnt({3-i})")
        A(f"ds_write_b128 v14, {v(16+4*i,4)} offset:{UOFF + 1024*i}")
    A("s_waitcnt lgkmcnt(0)")
    SA = [64, 128]; SB = [96, 160]; ACC = 192
    def reads(r, st):
        out = []
        for i in range(8):
            out.append(f"ds_read_b64 {v(SA[st]+4*i,2)}, v10 offset:{64*r + 512*i}")
            out.append(f"ds_read_b128 {v(SB[st]+4*i,4)}, v11 offset:{512*(7-i) + 64*r}")
            out.append(f"ds_read_b64 {v(SA[st]+4*i+2,2)}, v10 offset:{64*r + 512*i + 8}")
        return out
    for x in reads(0, 0): A(x)
    for r in range(8):
        st = r & 1
        A("s_waitcnt lgkmcnt(0)")
        nxt = reads(r+1, 1-st) if r < 7 else []
        k = 0
        for i in range(8):
            for n in range(i, 8):
                c = "0" if (r == 0 and i == 0) else v(ACC+4*n,4)
                A(f"v_mfma_f32_16x16x32_bf16 {v(ACC+4*n,4)}, {v(SA[st]+4*i,4)}, {v(SB[st]+4*(n-i),4)}, {c}")
                if k < len(nxt):
                    A(nxt[k]); k += 1
    stamp(A, 29)
    for n in range(8):
        A(f"ds_read_b64 {v(64+2*n,2)}, v13 offset:{512*(7-n)}")
    A("v_lshlrev_b32 v4, 16, v4")
    A("v_mov_b32 v5, v4")
    A("s_nop 7")
    A("s_waitcnt lgkmcnt(0)")
    for n in range(8):
        k0 = 64 + 2*n; t = 96; a0 = ACC + 4*n
        A(f"v_and_b32 v{t}, 0xffff0000, v{k0+1}")
        A(f"v_lshlrev_b32 v{t+1}, 16, v{k0+1}")
        A(f"v_and_b32 v{t+2}, 0xffff0000, v{k0}")
        A(f"v_lshlrev_b32 v{t+3}, 16, v{k0}")
        A(f"v_pk_mul_f32 {v(t,2)}, {v(t,2)}, v[4:5]")
        A(f"v_pk_mul_f32 {v(t+2,2)}, {v(t+2,2)}, v[4:5]")
        A(f"v_cvt_pk_bf16_f32 v{t+4}, v{t}, v{t+1}")
        A(f"v_cvt_pk_bf16_f32 v{t+5}, v{t+2}, v{t+3}")
        A(f"v_cvt_pk_bf16_f32 v{t+6}, v{a0}, v{a0+1}")
        A(f"v_cvt_pk_bf16_f32 v{t+7}, v{a0+2}, v{a0+3}")
        unpack(A, t, t+4); unpack(A, t+2, t+5); unpack(A, t+8, t+6); unpack(A, t+10, t+7)
        A(f"v_pk_add_f32 {v(t,2)}, {v(t,2)}, {v(t+8,2)}")
        A(f"v_pk_add_f32 {v(t+2,2)}, {v(t+2,2)}, {v(t+10,2)}")
        o = 112 + 4*(n//2) + 2*(n & 1)
        A(f"v_cvt_pk_bf16_f32 v{o}, v{t}, v{t+1}")
        A(f"v_cvt_pk_bf16_f32 v{o+1}, v{t+2}, v{t+3}")
        if n & 1:
            b = 112 + 4*(n//2)
            A("s_nop 1")
            A(f"v_permlane16_swap_b32 v{b}, v{b+2}")
            A(f"v_permlane16_swap_b32 v{b+1}, v{b+3}")
            A(f"buffer_store_dwordx4 {v(b,4)}, v12, s[12:15], s23 offen offset:{512*(n-1)} sc1")
    A("s_waitcnt vmcnt(0)")
    A(f"s_lshl_b32 s24, s{SD}, 2")
    signal_flag(A, 24, 16, imm=0) if False else None
    A(f"s_add_u32 s24, s24, {F_Z}")
    signal_flag(A, 24, 16)
    stamp(A, 30)

def gemm2_wave(A, DEPTH=4):
    A("s_and_b32 s20, s2, 7")
    A("s_lshr_b32 s21, s2, 3")
    A("s_lshr_b32 s22, s20, 1")
    A("s_lshl_b32 s22, s22, 3")
    A("s_and_b32 s23, s21, 7")
    A("s_add_u32 s30, s22, s23")
    A("s_and_b32 s22, s20, 1")
    A("s_lshl_b32 s22, s22, 2")
    A("s_lshr_b32 s23, s21, 3")
    A("s_add_u32 s31, s22, s23")
    W = S_WAVE
    load_ptr(A, 4, "ws"); load_ptr(A, 8, "ws"); load_ptr(A, 12, "q"); load_ptr(A, 16, "ws")
    load_ptr(A, 52, "ws"); load_ptr(A, 20, "b2")
    A("v_and_b32 v2, 63, v0")
    A("v_lshlrev_b32 v3, 4, v2")
    A("v_add_u32 v4, 4096, v3")
    A(f"s_mul_i32 s24, s{W}, 12")
    A("s_mul_i32 s25, s30, 48")
    A("s_add_u32 s25, s25, s24")
    A("s_lshl_b32 s32, s25, 12")
    A("s_mul_i32 s25, s31, 48")
    A("s_add_u32 s25, s25, s24")
    A("s_mul_i32 s33, s25, 5120")
    A("s_waitcnt lgkmcnt(0)")
    make_srd(A, 4, 32*48*4096, add=WS_H)
    make_srd(A, 8, 8*48*5120, add=WS_W2)
    make_srd(A, 12, SZ["q"])
    make_srd(A, 16, 640*4096, add=WS_Z)
    make_srd(A, 52, 2048*8, add=WS_ST)
    make_srd(A, 20, SZ["b2"])
    ACC = 24; FR0 = 104
    A("v_and_b32 v5, 15, v2")
    A("v_lshrrev_b32 v8, 4, v2")
    A("s_lshl_b32 s24, s30, 6")
    A(f"s_lshl_b32 s25, s{W}, 4")
    A("s_add_u32 s24, s24, s25")
    A("v_add_u32 v5, s24, v5")
    A("v_lshlrev_b32 v9, 3, v5")
    A("s_movk_i32 s26, 1280")
    A("v_mul_lo_u32 v20, v5, s26")
    A("s_mul_i32 s27, s31, 160")
    A("v_lshlrev_b32 v21, 3, v8")
    A("v_add_u32 v21, s27, v21")
    A("v_add_u32 v20, v20, v21")
    for db in range(5):
        A(f"buffer_load_dwordx2 {v(10+2*db,2)}, v20, s[12:15], 0 offen offset:{32*db}")
    A(f"s_mul_i32 s24, s{W}, 48")
    A(f"s_add_u32 s24, s24, {F_W2}")
    A("v_lshlrev_b32 v22, 2, v2")
    A("v_add_u32 v23, s24, v22")
    A("s_lshl_b32 s24, s30, 3")
    A(f"s_add_u32 s24, s24, {F_ST - 48}")
    A("v_add_u32 v6, s24, v22")
    A("v_cmp_gt_u32 vcc, 12, v2")
    A("s_nop 1")
    A("v_cndmask_b32 v23, v6, v23, vcc")
    poll_flags(A, 23, 6, 14)
    A("buffer_load_dwordx2 v[6:7], v9, s[52:55], 0 offen sc1")
    def loadsW(st):
        b = FR0 + 36*(st % DEPTH)
        out = []
        for db in range(4):
            out.append(f"buffer_load_dwordx4 {v(b+16+4*db,4)}, v3, s[8:11], s33 offen offset:{1024*db} sc1")
        out.append(f"buffer_load_dwordx4 {v(b+32,4)}, v4, s[8:11], s33 offen sc1")
        out.append("s_add_u32 s33, s33, 5120")
        return out
    def loadsH(st):
        b = FR0 + 36*(st % DEPTH)
        out = []
        for tb in range(4):
            out.append(f"buffer_load_dwordx4 {v(b+4*tb,4)}, v3, s[4:7], s32 offen offset:{1024*tb} sc1")
        out.append("s_add_u32 s32, s32, 4096")
        return out
    for st in range(DEPTH):
        for x in loadsW(st): A(x)
    stamp(A, 27)
    A("s_mul_i32 s24, s30, 24")
    A(f"s_mul_i32 s25, s{W}, 6")
    A("s_add_u32 s24, s24, s25")
    A("s_lshl_b32 s24, s24, 2")
    A(f"s_add_u32 s24, s24, {F_H}")
    A("v_add_u32 v23, s24, v22")
    poll_flags(A, 23, 8, 6)
    stamp(A, 28)
    dbgt(A, 7, 8, 0)
    for st in range(DEPTH):
        for x in loadsH(st): A(x)
    NST = 12
    for st in range(NST):
        if st < DEPTH:
            younger = 4*(DEPTH - 1 - st) + 9*min(st, NST - DEPTH)
            younger = 4*(DEPTH-1-st) + 9*st if st + 0 <= NST - DEPTH else younger
        else:
            younger = 9*min(DEPTH - 1, NST - 1 - st)
        A(f"s_waitcnt vmcnt({younger})")
        b = FR0 + 36*(st % DEPTH)
        for db in range(5):
            for tb in range(4):
                acc = v(ACC + (db*4+tb)*4, 4)
                A(f"v_mfma_f32_16x16x32_bf16 {acc}, {v(b+16+4*db,4)}, {v(b+4*tb,4)}, {'0' if st == 0 else acc}")
        if st + DEPTH < NST:
            for x in loadsW(st + DEPTH): A(x)
            for x in loadsH(st + DEPTH): A(x)
    stamp(A, 29)
    dbgt(A, 8, 8, 0)
    for db in range(5):
        A(f"buffer_load_dwordx2 {v(104+2*db,2)}, v21, s[20:23], 0 offen offset:{32*db}")
    A("s_nop 7")
    for tb in range(4):
        lab = A.uid("g2skip")
        A(f"s_cmp_eq_u32 s{W}, {tb}")
        A(f"s_cbranch_scc1 {lab}")
        A(f"s_sub_u32 s24, s{W}, {tb+1}")
        A("s_and_b32 s24, s24, 3")
        A("s_mul_i32 s24, s24, 5120")
        A(f"s_add_u32 s24, s24, {RED + tb*15360}")
        A("v_add_u32 v5, s24, v3")
        for db in range(5):
            A(f"ds_write_b128 v5, {v(ACC+(db*4+tb)*4,4)} offset:{1024*db}")
        A.label(lab)
    for tb in range(4):
        lab = A.uid("g2own")
        A(f"s_cmp_lg_u32 s{W}, {tb}")
        A(f"s_cbranch_scc1 {lab}")
        for db in range(5):
            for r in range(4):
                A(f"v_mov_b32 v{116+4*db+r}, v{ACC+(db*4+tb)*4+r}")
        A.label(lab)
    A("s_mul_i32 s24, s31, 80")
    A(f"s_mul_i32 s25, s{W}, 20")
    A("s_add_u32 s24, s24, s25")
    A("s_lshl_b32 s25, s24, 2")
    A(f"s_add_u32 s25, s25, {F_Z}")
    A("v_add_u32 v23, s25, v22")
    poll_flags(A, 23, 8, 20)
    stamp(A, 30)
    A("v_lshrrev_b32 v8, 3, v2")
    A("v_and_b32 v9, 7, v2")
    A("v_lshlrev_b32 v23, 12, v8")
    A("v_lshl_add_u32 v23, v9, 4, v23")
    A("s_lshl_b32 s25, s24, 12")
    A("s_lshl_b32 s26, s30, 7")
    A("s_add_u32 s25, s25, s26")
    A("v_mov_b32 v24, 0x80000000")
    A("v_cmp_gt_u32 vcc, 32, v2")
    A("s_nop 1")
    A("v_add_u32 v25, 0x10000, v23")
    A("v_cndmask_b32 v25, v24, v25, vcc")
    A("buffer_load_dwordx4 v[28:31], v23, s[16:19], s25 offen sc1")
    A("v_add_u32 v26, 0x8000, v23")
    A("buffer_load_dwordx4 v[32:35], v26, s[16:19], s25 offen sc1")
    A("buffer_load_dwordx4 v[36:39], v25, s[16:19], s25 offen sc1")
    A(f"s_mul_i32 s24, s{W}, 2560")
    A(f"s_add_u32 s24, s24, {ZT}")
    A("v_add_u32 v5, s24, v3")
    A("s_waitcnt vmcnt(2)")
    A("ds_write_b128 v5, v[28:31]")
    A("s_waitcnt vmcnt(1)")
    A("ds_write_b128 v5, v[32:35] offset:1024")
    A("s_waitcnt vmcnt(0)")
    A("s_mov_b32 exec_hi, 0")
    A("ds_write_b128 v5, v[36:39] offset:2048")
    A("s_mov_b32 exec_hi, -1")
    A("s_waitcnt lgkmcnt(0)")
    A.label("g2_bar")
    A("s_barrier")
    A(f"s_mul_i32 s24, s{W}, 15360")
    A(f"s_add_u32 s24, s24, {RED}")
    A("v_add_u32 v5, s24, v3")
    for sp in range(3):
        for db in range(5):
            A(f"ds_read_b128 {v(24+20*sp+4*db,4)}, v5 offset:{sp*5120 + db*1024}")
    A("v_and_b32 v8, 15, v2")
    A("v_lshrrev_b32 v9, 4, v2")
    A("v_lshrrev_b32 v22, 2, v8")
    A("v_lshl_add_u32 v22, v9, 2, v22")
    A("v_lshlrev_b32 v22, 7, v22")
    A("v_and_b32 v8, 3, v8")
    A("v_lshl_add_u32 v22, v8, 3, v22")
    A(f"s_lshl_b32 s24, s{W}, 5")
    A(f"s_add_u32 s24, s24, {ZT}")
    A("v_add_u32 v22, s24, v22")
    for db in range(5):
        A(f"ds_read_b64_tr_b16 {v(136+2*db,2)}, v22 offset:{2048*db}")
    load_ptr(A, 52, "out")
    A("s_waitcnt lgkmcnt(0)")
    make_srd(A, 52, SZ["out"])
    for sp in range(3):
        for db in range(5):
            A(f"v_pk_add_f32 {v(116+4*db,2)}, {v(116+4*db,2)}, {v(24+20*sp+4*db,2)}")
            A(f"v_pk_add_f32 {v(116+4*db+2,2)}, {v(116+4*db+2,2)}, {v(24+20*sp+4*db+2,2)}")
    A("v_mul_f32 v8, v7, v7"); A("v_mov_b32 v9, v8")
    A("v_lshlrev_b32 v148, 16, v6"); A("v_mov_b32 v149, v148")
    A("v_mov_b32 v150, v7"); A("v_mov_b32 v151, v7")
    A("s_mov_b32 s24, 0xbfb8aa3b")
    def rnd(dst, tmp):
        A(f"v_cvt_pk_bf16_f32 v{tmp}, v{dst}, v{dst+1}")
        unpack(A, dst, tmp)
    for db in range(5):
        for hp in range(2):
            o = 116 + 4*db + 2*hp
            t = 24
            A(f"v_pk_mul_f32 {v(o,2)}, {v(o,2)}, v[8:9]")
            rnd(o, t)
            unpack(A, t+2, 104 + 2*db + hp)
            A(f"v_pk_add_f32 {v(o,2)}, {v(o,2)}, {v(t+2,2)}")
            rnd(o, t)
            A(f"v_mul_f32 v{t+2}, s24, v{o}")
            A(f"v_mul_f32 v{t+3}, s24, v{o+1}")
            A(f"v_exp_f32 v{t+2}, v{t+2}")
            A(f"v_exp_f32 v{t+3}, v{t+3}")
            A("s_nop 0")
            A(f"v_add_f32 v{t+2}, 1.0, v{t+2}")
            A(f"v_add_f32 v{t+3}, 1.0, v{t+3}")
            A(f"v_rcp_f32 v{t+2}, v{t+2}")
            A(f"v_rcp_f32 v{t+3}, v{t+3}")
            A("s_nop 0")
            A(f"v_pk_mul_f32 {v(o,2)}, {v(o,2)}, {v(t+2,2)}")
            rnd(o, t)
            unpack(A, t+4, 10 + 2*db + hp)
            A(f"v_pk_add_f32 {v(t+6,2)}, {v(t+4,2)}, v[148:149] neg_lo:[0,1] neg_hi:[0,1]")
            rnd(t+6, t)
            A(f"v_pk_mul_f32 {v(t+6,2)}, {v(t+6,2)}, v[150:151]")
            rnd(t+6, t)
            unpack(A, t+8, 136 + 2*db + hp)
            A(f"v_pk_mul_f32 {v(t+6,2)}, {v(t+6,2)}, {v(t+8,2)}")
            rnd(t+6, t)
            A(f"v_pk_mul_f32 {v(t+6,2)}, {v(t+6,2)}, {v(o,2)}")
            rnd(t+6, t)
            A(f"v_pk_add_f32 {v(t+6,2)}, {v(t+6,2)}, {v(t+4,2)}")
            A(f"v_cvt_pk_bf16_f32 v{152+2*db+hp}, v{t+6}, v{t+7}")
        A(f"buffer_store_dwordx2 {v(152+2*db,2)}, v20, s[52:55], 0 offen offset:{32*db}")

def gen_fused(A, name):
    kstart(A, name)
    END = f"{name}_end"
    A("s_cmp_ge_u32 s2, 256")
    A(f"s_cbranch_scc1 {END}")
    stamp(A, 0); stamp_rt(A, 1)
    if DBGT:
        A("s_memtime s[60:61]")
    A("v_lshrrev_b32 v1, 6, v0")
    A("s_nop 0")
    A(f"v_readfirstlane_b32 s{S_WAVE}, v1")
    A("s_nop 3")
    A("s_cmp_ge_u32 s2, 192")
    A("s_cbranch_scc1 L_helper")
    A("s_and_b32 s20, s2, 7")
    A("s_lshr_b32 s21, s2, 3")
    A("s_lshr_b32 s22, s20, 1")
    A("s_lshl_b32 s22, s22, 2")
    A("s_and_b32 s23, s21, 3")
    A("s_add_u32 s30, s22, s23")
    A("s_and_b32 s22, s20, 1")
    A("s_mul_i32 s22, s22, 6")
    A("s_lshr_b32 s23, s21, 2")
    A("s_add_u32 s31, s22, s23")
    A(f"s_cmp_ge_u32 s{S_WAVE}, 4")
    A("s_cbranch_scc1 L_g1prod")
    g1_consumer(A)
    A("s_branch L_gemm2")
    A.label("L_g1prod")
    g1_producer(A)
    A("s_branch L_convsel")
    A.label("L_helper")
    helper(A)
    A(f"s_cmp_lt_u32 s{S_WAVE}, 4")
    A("s_cbranch_scc1 L_gemm2")
    A.label("L_convsel")
    A("s_cmp_ge_u32 s2, 160")
    A("s_cbranch_scc1 L_convdone")
    conv_wave(A)
    A.label("L_convdone")
    stamp_rt(A, 31 - 0) if False else None
    stamp_rt(A, 26)
    stamp_flush(A, 31, f"s{S_WAVE}")
    A("s_barrier")
    A("s_endpgm")
    A.label("L_gemm2")
    gemm2_wave(A)
    dbgt(A, 9, 8, 0)
    stamp(A, 25) if False else None
    stamp_rt(A, 26)
    stamp_flush(A, 31, f"s{S_WAVE}")
    A.label(END)
    A("s_endpgm")
    return dict(vgpr=256, lds=LDS_TOTAL)

KNAME = "recurrent_scan__ssm_conv_h3__dense_activation_squared_relu__prompt_kernel"
HDR = open("recurrent_scan__ssm_conv_h3__dense_activation_squared_relu__prompt.s.ref").read().split("; Override launch")[0]
def build():
    A = Asm()
    info = gen_fused(A, KNAME)
    out = HDR + f"; @launch grid=(256,1,1) block=(512,1,1) lds={info['lds']}\n"
    out += '.amdgcn_target "amdgcn-amd-amdhsa--gfx950"\n.text\n' + A.text() + '.section .rodata,"a"\n' + kdesc(KNAME, info["vgpr"])
    return out

if __name__ == "__main__":
    if os.environ.get("STAMPS"): asmlib.STAMPS = True
    open(sys.argv[1] if len(sys.argv) > 1 else "f1.s", "w").write(build())
```
